```python
import torch

def _softmax(x, axis=-1):
    return torch.softmax(x, dim=axis)
def _gelu(x):
    return torch.nn.functional.gelu(x, approximate="tanh")
def _silu(x):
    return torch.nn.functional.silu(x)
def _sigmoid(x):
    return torch.sigmoid(x)
def _layernorm(x, axis=-1, eps=1e-5):
    m = x.mean(dim=axis, keepdim=True)
    v = x.var(dim=axis, keepdim=True, unbiased=False)
    return (x - m) / torch.sqrt(v + eps)
def _scatter_add(tgt, idx, src, axis=0):
    return tgt.clone().index_add_(axis, idx, src)
def _segment_sum(src, seg, n):
    out = torch.zeros((n,) + src.shape[1:], dtype=src.dtype)
    return out.index_add_(0, seg, src)
def _pad(x, pw):
    flat = tuple(v for pair in reversed(pw) for v in pair)
    return torch.nn.functional.pad(x, flat)

kernel_name = 'sequential_preLN__ssm_conv_s4d__mixer_channel_mlp__prompt'

def setup_inputs():

    _w = (lambda a: (lambda t: t.to(torch.bfloat16) if t.is_floating_point() else t)(torch.as_tensor(a)))
    def _A_setup():
        Bsz, L, D, N = 1, 2048, 512, 128
        return {
            "u": _w((lambda *s: torch.randn(*s, dtype=torch.bfloat16) * 0.05)(Bsz, L, D)),
            "log_A_real": _w((lambda *s: torch.randn(*s, dtype=torch.bfloat16) * 3.2)(D, N) * 0.5),
            "A_imag": _w((lambda *s: torch.randn(*s, dtype=torch.bfloat16) * 0.05)(D, N) * 3.14),
            "C_real": _w((lambda *s: torch.randn(*s, dtype=torch.bfloat16) * 0.1)(D, N) / N ** 0.5),
            "C_imag": _w((lambda *s: torch.randn(*s, dtype=torch.bfloat16) * 0.2)(D, N) / N ** 0.5),
            "log_dt": _w((lambda *s: torch.randn(*s, dtype=torch.bfloat16) * 0.05)(D) * 0.5 - 4.0),
            "D_skip": _w((lambda *s: torch.randn(*s, dtype=torch.bfloat16) * 0.05)(D)),
        }
    _A_in = _A_setup()

    def _B_setup():
        B, S, D, F = 1, 2048, 512, 1376
        return {
            "x": _w((lambda *s: torch.randn(*s, dtype=torch.bfloat16) * 0.05)(B, S, D)),
            "w1": _w((lambda *s: torch.randn(*s, dtype=torch.bfloat16) * 1.6)(D, F) * (D ** -0.5)),
            "b1": _w((lambda *s: torch.randn(*s, dtype=torch.bfloat16) * 0.8)(F)),
            "w2": _w((lambda *s: torch.randn(*s, dtype=torch.bfloat16) * 0.05)(F, D) * (F ** -0.5)),
            "b2": _w((lambda *s: torch.randn(*s, dtype=torch.bfloat16) * 0.05)(D)),
        }
    _B_in = _B_setup()

    return {
        "A_u": _A_in["u"],
        "A_log_A_real": _A_in["log_A_real"],
        "A_A_imag": _A_in["A_imag"],
        "A_C_real": _A_in["C_real"],
        "A_C_imag": _A_in["C_imag"],
        "A_log_dt": _A_in["log_dt"],
        "A_D_skip": _A_in["D_skip"],
        "B_x": _B_in["x"],
        "B_w1": _B_in["w1"],
        "B_b1": _B_in["b1"],
        "B_w2": _B_in["w2"],
        "B_b2": _B_in["b2"],
    }

def reference(A_u, A_log_A_real, A_A_imag, A_C_real, A_C_imag, A_log_dt, A_D_skip, B_x, B_w1, B_b1, B_w2, B_b2):
    def _A_ref(u, log_A_real, A_imag, C_real, C_imag, log_dt, D_skip):
        L = u.shape[1]
        dt = torch.exp(log_dt)
        A = -torch.exp(log_A_real) + 1j * A_imag
        C = (C_real + 1j * C_imag) * dt[:, None]
        pos = (lambda x, dt: x.to(dt))(torch.arange(L), log_dt.dtype)
        P = torch.exp((A * dt[:, None])[:, :, None] * pos[None, None, :])
        K = 2.0 * torch.einsum("dn,dnl->dl", C, P).real
        L2 = 2 * L
        u_t = (lambda x, *d: x.permute(*d))(u, 0, 2, 1)
        Kf = (lambda x, *a, **k: torch.fft.rfft(x.float(), *a, **k))(K, L2)
        Uf = (lambda x, *a, **k: torch.fft.rfft(x.float(), *a, **k))(u_t, L2)
        y = (lambda x, *a, **k: torch.fft.irfft(x, *a, **k).to(torch.bfloat16))(Uf * Kf[None, :, :], L2)[:, :, :L]
        y = (lambda x, *d: x.permute(*d))(y, 0, 2, 1)
        return y + u * D_skip[None, None, :]

    def _B_ref(x, w1, b1, w2, b2):
        y = _layernorm(x, axis=-1)
        h = _gelu(torch.einsum("bsd,df->bsf", y, w1) + b1)
        return torch.einsum("bsf,fd->bsd", h, w2) + b2

    x = A_u
    h = x + _A_ref(_layernorm(x, axis=-1), A_log_A_real, A_A_imag, A_C_real, A_C_imag, A_log_dt, A_D_skip)
    h2 = h + _B_ref(_layernorm(h, axis=-1), B_w1, B_b1, B_w2, B_b2)
    return h2
```

```python
import re

TRANS = ("v_exp_f32", "v_log_f32", "v_rcp_f32", "v_rsq_f32", "v_sqrt_f32", "v_sin_f32", "v_cos_f32")
REG_RE = re.compile(r"\b([vsa])\[(\d+):(\d+)\]|\b([vsa])(\d+)\b|\b(vcc|exec|m0)\b")


def regs_of(tok):
    out = []
    for m in REG_RE.finditer(tok):
        if m.group(1):
            for i in range(int(m.group(2)), int(m.group(3)) + 1):
                out.append((m.group(1), i))
        elif m.group(4):
            out.append((m.group(4), int(m.group(5))))
        else:
            out.append((m.group(6), 0))
    return out


def mfma_info(mn):
    if mn.endswith("_f32") and ("x4_f32" in mn or "x2_f32" in mn):
        return (8 if "16x16x4" in mn else 16, True)
    if "16x16x32" in mn or "16x16x16" in mn:
        return (4, False)
    if "32x32x16" in mn or "32x32x8" in mn:
        return (8, False)
    raise ValueError(mn)


class Asm:
    def __init__(self):
        self.lines = []
        self.pos = 0
        self.ev = []

    def raw(self, text):
        self.lines.append(text)

    def comment(self, text):
        self.lines.append("    ; " + text)

    def label(self, name):
        self.lines.append(name + ":")

    def nop(self, n):
        while n > 0:
            k = min(n, 16)
            self.lines.append("    s_nop %d" % (k - 1))
            self.pos += k
            n -= k

    def flush(self):
        need = 0
        for (p, kind, regs, extra) in self.ev:
            if kind == "mfma":
                passes, sg = extra
                n = {2: 5, 4: 8, 8: 12, 16: 20}[passes]
            elif kind == "valu_s":
                n = 5
            else:
                n = 2
            need = max(need, p + n + 1 - self.pos)
        if need > 0:
            self.nop(need)
        self.ev = []

    def __call__(self, text):
        text = text.strip()
        mn = text.split()[0]
        rest = text[len(mn):]
        ops = [o.strip() for o in rest.split(",")]
        is_mfma = mn.startswith("v_mfma")
        is_valu = mn.startswith("v_") and not is_mfma
        is_vmem = mn.startswith("buffer_") or mn.startswith("global_")
        is_ds = mn.startswith("ds_")
        is_store = ("store" in mn) or mn.startswith("ds_write") or (mn.startswith("buffer_atomic") and "sc0" not in text)
        is_dpp = any(k in text for k in ("quad_perm", "row_shr", "row_shl", "row_ror", "row_mirror", "row_half_mirror", "row_bcast", "wave_shr", "row_newbcast"))
        is_lds_dma = is_vmem and (" lds" in text or "_lds_" in mn)
        allregs = regs_of(rest)
        dst, src = [], []
        if is_store or is_lds_dma:
            src = allregs
        elif is_valu or is_mfma or is_vmem or is_ds or mn.startswith("s_"):
            if ops and ops[0]:
                dst = regs_of(ops[0])
                src = regs_of(",".join(ops[1:]))
            if mn in ("v_fmac_f32", "v_fmac_f32_e32", "v_pk_fmac_f16") or mn.startswith("v_permlane") or mn.startswith("v_writelane") or is_dpp or "d16" in mn:
                src = src + dst
            if mn.startswith("v_permlane") or mn.startswith("v_swap"):
                dst = regs_of(ops[0]) + regs_of(ops[1])
                src = list(dst)
            if mn.startswith("v_add_co") or mn.startswith("v_addc_co") or mn.startswith("v_sub_co") or mn.startswith("v_div_scale"):
                dst = regs_of(ops[0]) + regs_of(ops[1])
                src = regs_of(",".join(ops[2:]))
            if mn.startswith("v_cndmask") and len(ops) == 3:
                src = src + [("vcc", 0)]
        if mn.startswith("s_cmp") or mn.startswith("s_cbranch") or mn in ("s_branch", "s_barrier", "s_waitcnt", "s_endpgm", "s_nop", "s_setprio", "s_sleep"):
            dst = []
            src = allregs
        srcset = set(src)
        dstset = set(dst)
        need = 0

        def req(p, n):
            nonlocal need
            need = max(need, p + n + 1 - self.pos)

        for (p, kind, regs, extra) in self.ev:
            rs = set(regs)
            if kind in ("valu", "trans", "opsel"):
                if rs & srcset:
                    if is_dpp:
                        req(p, 2)
                    if is_mfma:
                        req(p, 2)
                    if mn.startswith("v_readlane") or mn.startswith("v_readfirstlane"):
                        req(p, 1)
                    if mn.startswith("v_permlane"):
                        req(p, 2)
                    if kind == "trans" and is_valu and mn not in TRANS:
                        req(p, 1)
                    if kind == "opsel" and is_valu:
                        req(p, 1)
                if kind == "opsel" and is_valu and (rs & dstset):
                    req(p, 1)
            elif kind == "valu_s":
                if rs & srcset:
                    if is_valu:
                        req(p, 4 if (mn.startswith("v_readlane") or mn.startswith("v_writelane")) else 2)
                    if is_vmem:
                        req(p, 5)
            elif kind == "mfma":
                passes, sg = extra
                tab = {2: 4, 4: 6, 8: 10, 16: 18} if sg else {2: 5, 4: 8, 8: 12, 16: 20}
                if is_mfma:
                    ab = set(regs_of(ops[1]) + regs_of(ops[2]))
                    c = regs_of(ops[3])
                    if rs & ab:
                        req(p, tab[passes])
                    if rs & set(c):
                        if list(regs) != c or mfma_info(mn) != extra:
                            req(p, {2: 4, 4: 6, 8: 10, 16: 18}[passes])
                        elif passes == 2:
                            req(p, 2)
                elif (is_valu or is_vmem or is_ds) and (rs & (srcset | dstset)):
                    req(p, tab[passes])
            elif kind == "mfma_c":
                passes, sg = extra
                if not sg and is_valu and (rs & dstset):
                    req(p, {2: 1, 4: 3, 8: 7, 16: 15}[passes])
            elif kind == "wstore":
                if (is_valu or is_mfma) and (rs & dstset):
                    req(p, 2)
                elif rs & dstset:
                    req(p, 1)
            elif kind == "m0":
                if is_lds_dma:
                    req(p, 1)
        if need > 0:
            self.nop(need)
        self.lines.append("    " + text)
        p = self.pos
        self.pos += 1
        if is_mfma:
            info = mfma_info(mn)
            self.ev.append((p, "mfma", dst, info))
            self.ev.append((p, "mfma_c", regs_of(ops[3]), info))
        elif is_valu:
            vd = [r for r in dst if r[0] in ("v", "a")]
            sd = [r for r in dst if r[0] in ("s", "vcc", "exec")]
            if mn.startswith("v_cmp") and not sd:
                sd = [("vcc", 0)]
            if vd:
                kind = "trans" if mn in TRANS else ("opsel" if (("op_sel" in text and not mn.startswith("v_pk_")) or "dst_sel" in text) else "valu")
                self.ev.append((p, kind, vd, None))
            if sd:
                self.ev.append((p, "valu_s", sd, None))
        elif is_store and is_vmem and ("x4" in mn or "x3" in mn):
            self.ev.append((p, "wstore", regs_of(ops[0]), None))
        elif mn.startswith("s_") and ("m0", 0) in dstset:
            self.ev.append((p, "m0", [("m0", 0)], None))
        self.ev = [e for e in self.ev if self.pos - e[0] <= 24]

    def text(self):
        return "\n".join(self.lines) + "\n"
```

```python
from gen import *

U0, U1, KH, KL, SC, PR, DSZ = 0, 4160, 8320, 12928, 17536, 25728, 27776
L2E = "0x3fb8aa3b"
L2E_LO = "0x32a57060"
LN2 = "0x3f317218"


def exp_acc(a, d, x, t1, t2):
    a(f"v_mul_f32 v{t1}, {L2E}, v{x}")
    a(f"v_mov_b32 v{t2}, {L2E}")
    a(f"v_fma_f32 v{t2}, v{x}, v{t2}, -v{t1}")
    a(f"v_fmac_f32 v{t2}, {L2E_LO}, v{x}")
    a(f"v_exp_f32 v{d}, v{t1}")
    a(f"v_mul_f32 v{t2}, {LN2}, v{t2}")
    a(f"v_fmac_f32 v{d}, v{d}, v{t2}")


def gen_k2(a):
    kernel_head(a, "k2_kernel")
    a("s_cmp_ge_u32 s2, 256")
    a("s_cbranch_scc1 K2_END")
    a(f"s_load_dwordx4 s[4:7], s[0:1], {KA_LOGA}")
    a(f"s_load_dwordx4 s[8:11], s[0:1], {KA_CRE}")
    a(f"s_load_dwordx4 s[12:15], s[0:1], {KA_LOGDT}")
    a(f"s_load_dwordx2 s[16:17], s[0:1], {KA_WS}")
    vT, vLane, vBb, vAb, vDsk, vBase, vC, vG = 224, 225, 226, 227, 231, 232, 233, 234
    a(f"v_and_b32 v{vT}, 127, v0")
    a(f"v_and_b32 v{vLane}, 63, v0")
    a("v_lshrrev_b32 v1, 6, v0")
    a("v_readfirstlane_b32 s18, v1")
    a("s_lshr_b32 s19, s18, 1")
    a("s_and_b32 s18, s18, 1")
    a("s_lshl_b32 s20, s2, 1")
    a("s_add_u32 s20, s20, s19")
    a(f"s_mul_i32 s21, s19, {DSZ}")
    a(f"v_mov_b32 v{vBase}, s21")
    a("s_waitcnt lgkmcnt(0)")
    srd(a, 24, 4, 5, 0x20000)
    srd(a, 28, 6, 7, 0x20000)
    srd(a, 32, 8, 9, 0x20000)
    srd(a, 36, 10, 11, 0x20000)
    srd(a, 40, 12, 13, 0x400)
    srd(a, 44, 14, 15, 0x400)
    srd(a, 48, 16, 17, 0x200000, WS_UT)
    srd(a, 52, 16, 17, 0x200000, WS_AT)
    a("s_lshl_b32 s22, s20, 8")
    a(f"v_lshl_add_u32 v1, v{vT}, 1, s22")
    a("buffer_load_ushort v4, v1, s[24:27], 0 offen")
    a("buffer_load_ushort v5, v1, s[28:31], 0 offen")
    a("buffer_load_ushort v6, v1, s[32:35], 0 offen")
    a("buffer_load_ushort v7, v1, s[36:39], 0 offen")
    a("s_lshl_b32 s22, s20, 1")
    a("v_mov_b32 v2, s22")
    a("buffer_load_ushort v8, v2, s[40:43], 0 offen")
    a(f"buffer_load_ushort v{vDsk}, v2, s[44:47], 0 offen")
    a("s_lshl_b32 s22, s20, 12")
    a(f"v_lshl_add_u32 v3, v{vT}, 5, s22")
    a("buffer_load_dwordx4 v[32:35], v3, s[48:51], 0 offen")
    a("buffer_load_dwordx4 v[36:39], v3, s[48:51], 0 offen offset:16")
    a("buffer_load_dword v40, v3, s[48:51], 0 offen offset:32")
    a(f"v_lshlrev_b32 v9, 4, v{vT}")
    a("v_sub_u32 v9, 2047, v9")
    a(f"v_add_u32 v15, {SC}, v{vBase}")
    for k in range(16):
        a(f"v_subrev_u32 v10, {k}, v9")
        a("v_cvt_f32_u32 v10, v10")
        a("v_cvt_pk_bf16_f32 v10, v10, v10")
        a("v_and_b32 v10, 0xffff0000, v10")
        a("v_cvt_u32_f32 v11, v10")
        a("v_bfe_u32 v10, v10, 23, 8")
        a("v_subrev_u32 v10, 134, v10")
        a("v_med3_i32 v10, v10, 0, 3")
        a("v_lshrrev_b32 v12, 7, v11")
        a("v_and_b32 v13, 7, v11")
        a("v_bfe_u32 v11, v11, 3, 4")
        a("v_sub_u32 v14, 3, v10")
        a("v_lshlrev_b32 v12, v14, v12")
        a("v_lshrrev_b32 v13, v10, v13")
        a("v_lshl_add_u32 v12, v10, 3, v12")
        a("v_add_u32 v12, v12, v13")
        a("v_lshl_add_u32 v12, v12, 4, v11")
        a(f"v_lshl_add_u32 v{16+k}, v12, 2, v15")
    a(f"v_and_b32 v{vC}, 15, v{vLane}")
    a(f"v_lshrrev_b32 v{vG}, 4, v{vLane}")
    a(f"v_cmp_le_u32 vcc, 8, v{vC}")
    a(f"v_add_u32 v9, 120, v{vC}")
    a(f"v_cndmask_b32 v44, v{vC}, v9, vcc")
    a("v_cvt_f32_u32 v44, v44")
    a(f"v_lshrrev_b32 v9, 2, v{vC}")
    a("v_lshlrev_b32 v9, 7, v9")
    a(f"v_and_b32 v10, 3, v{vC}")
    a("v_lshl_add_u32 v9, v10, 1, v9")
    a("v_add_u32 v9, 256, v9")
    a(f"v_subrev_u32 v10, 8, v{vC}")
    a("v_lshrrev_b32 v10, 1, v10")
    a("v_lshlrev_b32 v10, 7, v10")
    a(f"v_and_b32 v11, 1, v{vC}")
    a("v_lshl_add_u32 v10, v11, 2, v10")
    a("v_add_u32 v10, 512, v10")
    a("v_cndmask_b32 v45, v9, v10, vcc")
    a("v_cvt_f32_u32 v45, v45")
    a(f"v_lshlrev_b32 v9, 7, v{vC}")
    a("v_add_u32 v9, 1024, v9")
    a("v_min_u32 v9, 2048, v9")
    a("v_cvt_f32_u32 v46, v9")
    a(f"v_lshlrev_b32 v9, 3, v{vC}")
    a("v_cvt_f32_u32 v47, v9")
    a("s_lshl_b32 s22, s18, 10")
    a(f"s_add_u32 s22, s22, {PR}")
    a(f"v_lshl_add_u32 v48, v{vG}, 4, v{vBase}")
    a("v_add_u32 v48, s22, v48")
    a("s_waitcnt vmcnt(3)")
    for r in (4, 5, 6, 7, 8, vDsk):
        a(f"v_lshlrev_b32 v{r}, 16, v{r}")
    exp_acc(a, 9, 8, 10, 11)
    bf16r(a, 9, 9)
    exp_acc(a, 12, 4, 10, 11)
    bf16r(a, 12, 12)
    a("v_mul_f32 v12, v12, v9")
    a(f"v_mul_f32 v12, 0xbfb8aa3b, v12")
    a("v_mul_f32 v13, v5, v9")
    a("v_mul_f32 v13, 0.15915494, v13")
    a("v_mul_f32 v14, v6, v9")
    a("v_add_f32 v14, v14, v14")
    a("v_mul_f32 v15, v7, v9")
    a("v_add_f32 v15, v15, v15")
    a(f"v_lshl_add_u32 v9, v{vT}, 4, v{vBase}")
    a(f"ds_write_b128 v9, v[12:15] offset:{PR}")
    for i in range(12):
        a(f"v_mov_b32 v{96+i}, 0")
    a("s_waitcnt lgkmcnt(0)")
    a("s_barrier")

    def step_valu(s):
        pb = 52 + 4 * (s & 1)
        ob = 60 + 8 * (s & 1)
        ar2, air, c2r, c2i = pb, pb + 1, pb + 2, pb + 3
        out = []
        T = 76
        ent = [(47, None, ob, ob + 1), (44, 1, ob + 2, ob + 3), (45, 1, ob + 4, ob + 5), (46, 1, ob + 6, ob + 7)]
        for n_, (y, isA, o0, o1) in enumerate(ent):
            e, th, c, s_ = T + 4 * n_, T + 4 * n_ + 1, T + 4 * n_ + 2, T + 4 * n_ + 3
            out.append(f"v_mul_f32 v{e}, v{ar2}, v{y}")
            out.append(f"v_mul_f32 v{th}, v{air}, v{y}")
            out.append(f"v_exp_f32 v{e}, v{e}")
            out.append(f"v_fract_f32 v{th}, v{th}")
            out.append(f"v_cos_f32 v{c}, v{th}")
            out.append(f"v_sin_f32 v{s_}, v{th}")
            if not isA:
                out.append(f"v_mul_f32 v{o0}, v{e}, v{c}")
                out.append(f"v_mul_f32 v{o1}, v{e}, v{s_}")
            else:
                out.append(f"v_mul_f32 v{c}, v{e}, v{c}")
                out.append(f"v_mul_f32 v{s_}, v{e}, v{s_}")
                out.append(f"v_mul_f32 v{o0}, v{c2r}, v{c}")
                out.append(f"v_mul_f32 v{o1}, v{c2i}, v{c}")
                out.append(f"v_fma_f32 v{o0}, -v{c2i}, v{s_}, v{o0}")
                out.append(f"v_fma_f32 v{o1}, -v{c2r}, v{s_}, -v{o1}")
        return out

    def step_mfma(s):
        ob = 60 + 8 * (s & 1)
        out = []
        for part in (0, 1):
            for gmm in range(3):
                out.append(f"v_mfma_f32_16x16x4_f32 v[{96+4*gmm}:{99+4*gmm}], v{ob+2+2*gmm+part}, v{ob+part}, v[{96+4*gmm}:{99+4*gmm}]")
        return out

    a("ds_read_b128 v[52:55], v48 offset:0")
    a("ds_read_b128 v[56:59], v48 offset:64")
    a("s_waitcnt lgkmcnt(1)")
    for ins in step_valu(0):
        a(ins)
    for s in range(16):
        if s + 1 < 16:
            a("s_waitcnt lgkmcnt(0)")
        V = step_valu(s + 1) if s + 1 < 16 else []
        M = step_mfma(s)
        if s + 2 < 16:
            a(f"ds_read_b128 v[{52+4*(s&1)}:{55+4*(s&1)}], v48 offset:{64*(s+2)}")
        per = (len(V) + 5) // 6 if V else 0
        vi = 0
        for m in M:
            a(m)
            for _ in range(per):
                if vi < len(V):
                    a(V[vi]); vi += 1
        while vi < len(V):
            a(V[vi]); vi += 1
    a("s_mul_i32 s22, s18, 3072")
    a(f"s_add_u32 s22, s22, {SC}")
    a(f"v_lshl_add_u32 v9, v{vG}, 8, v{vBase}")
    a(f"v_lshl_add_u32 v9, v{vC}, 2, v9")
    a("v_add_u32 v9, s22, v9")
    for gmm in range(3):
        for r in range(4):
            a(f"ds_write_b32 v9, v{96+4*gmm+r} offset:{gmm*1024+r*64}")
    a("s_waitcnt vmcnt(0)")
    a(f"v_lshl_add_u32 v10, v{vT}, 5, v{vBase}")
    a(f"ds_write_b128 v10, v[32:35] offset:{U0+32}")
    a(f"ds_write_b128 v10, v[36:39] offset:{U0+48}")
    for k in range(8):
        a(f"v_alignbit_b32 v{44+k}, v{33+k}, v{32+k}, 16")
    a(f"ds_write_b128 v10, v[44:47] offset:{U1+32}")
    a(f"ds_write_b128 v10, v[48:51] offset:{U1+48}")
    for k in range(7):
        a(f"v_mov_b32 v{52+k}, 0")
    a("v_lshlrev_b32 v59, 16, v32")
    a("v_mov_b32 v60, 0")
    a("v_mov_b32 v61, 0")
    a("v_mov_b32 v62, 0")
    a("v_mov_b32 v63, 0")
    a(f"v_cmp_eq_u32 vcc, 0, v{vT}")
    a("s_and_saveexec_b64 s[56:57], vcc")
    a("s_cbranch_execz K2_Z1")
    a(f"ds_write_b128 v{vBase}, v[60:63] offset:{U0}")
    a(f"ds_write_b128 v{vBase}, v[60:63] offset:{U0+16}")
    a(f"ds_write_b128 v{vBase}, v[52:55] offset:{U1}")
    a(f"ds_write_b128 v{vBase}, v[56:59] offset:{U1+16}")
    a.label("K2_Z1")
    a("s_mov_b64 exec, s[56:57]")
    a(f"v_lshl_add_u32 v11, v{vT}, 4, v{vBase}")
    a(f"v_cmp_gt_u32 vcc, 30, v{vT}")
    a("s_and_saveexec_b64 s[56:57], vcc")
    a("s_cbranch_execz K2_Z2")
    a(f"ds_write_b128 v11, v[60:63] offset:{KH+4096}")
    a(f"ds_write_b128 v11, v[60:63] offset:{KL+4096}")
    a.label("K2_Z2")
    a("s_mov_b64 exec, s[56:57]")
    a("s_waitcnt lgkmcnt(0)")
    a("s_barrier")
    for k in range(16):
        a(f"ds_read2st64_b32 v[{64+2*k}:{65+2*k}], v{16+k} offset0:0 offset1:12")
    for k in range(16):
        a(f"s_waitcnt lgkmcnt({15-k})")
        a(f"v_add_f32 v{64+2*k}, v{64+2*k}, v{65+2*k}")
    for k in range(8):
        x0, x1 = 64 + 4 * k, 66 + 4 * k
        a(f"v_cvt_pk_bf16_f32 v{96+k}, v{x0}, v{x1}")
        a(f"v_lshlrev_b32 v{x0+1}, 16, v{96+k}")
        a(f"v_and_b32 v{x1+1}, 0xffff0000, v{96+k}")
        a(f"v_sub_f32 v{x0}, v{x0}, v{x0+1}")
        a(f"v_sub_f32 v{x1}, v{x1}, v{x1+1}")
        a(f"v_cvt_pk_bf16_f32 v{104+k}, v{x0}, v{x1}")
    a(f"ds_write_b128 v10, v[96:99] offset:{KH}")
    a(f"ds_write_b128 v10, v[100:103] offset:{KH+16}")
    a(f"ds_write_b128 v10, v[104:107] offset:{KL}")
    a(f"ds_write_b128 v10, v[108:111] offset:{KL+16}")
    a(f"v_lshrrev_b32 v9, 1, v{vG}")
    a(f"v_and_b32 v11, 1, v{vG}")
    a(f"v_sub_u32 v12, v9, v{vC}")
    a("v_lshlrev_b32 v12, 5, v12")
    a("v_lshlrev_b32 v13, 4, v11")
    a("v_sub_u32 v12, v12, v13")
    a("s_lshl_b32 s22, s18, 8")
    a(f"s_add_u32 s22, s22, {KH+496}")
    a(f"v_add3_u32 v{vBb}, v12, v{vBase}, s22")
    a(f"v_add_u32 v12, 1, v{vC}")
    a("v_and_b32 v12, 1, v12")
    a("v_lshlrev_b32 v13, 4, v9")
    a(f"v_add_u32 v13, v13, v{vC}")
    a("v_lshlrev_b32 v14, 3, v11")
    a("v_sub_u32 v13, v13, v14")
    a("v_sub_u32 v13, v13, v12")
    a("v_add_u32 v13, 9, v13")
    a("v_lshlrev_b32 v13, 1, v13")
    a("v_mul_u32_u24 v14, 4160, v12")
    a("v_add_u32 v13, v13, v14")
    a("s_lshl_b32 s22, s18, 8")
    a(f"v_add3_u32 v{vAb}, v13, v{vBase}, s22")
    for i in range(1, 4):
        a(f"v_add_u32 v{vAb+i}, {1024*i}, v{vAb}")
    a("s_waitcnt lgkmcnt(0)")
    a("s_barrier")

    for i in range(32):
        a(f"v_mov_b32 v{i}, 0")

    def reads(ri):
        sb = 32 + 96 * (ri & 1)
        out = []
        for q in range(8):
            ab = sb + 64 + 4 * q
            out.append((f"ds_read2_b32 v[{ab}:{ab+1}], v{vAb+(q>>1)} offset0:{16*ri+128*(q&1)} offset1:{16*ri+128*(q&1)+1}",
                        f"ds_read2_b32 v[{ab+2}:{ab+3}], v{vAb+(q>>1)} offset0:{16*ri+128*(q&1)+2} offset1:{16*ri+128*(q&1)+3}"))
        bs = []
        for p in range(7, -1, -1):
            bs.append(f"ds_read_b128 v[{sb+4*p}:{sb+4*p+3}], v{vBb} offset:{512*(7-p)+64*ri}")
            bs.append(f"ds_read_b128 v[{sb+32+4*p}:{sb+32+4*p+3}], v{vBb} offset:{4608+512*(7-p)+64*ri}")
        seq = list(out[0]) + bs
        for q in range(1, 8):
            seq += list(out[q])
        return seq

    def mfmas(ri):
        sb = 32 + 96 * (ri & 1)
        out = []
        for q in range(8):
            ab = sb + 64 + 4 * q
            for t in range(7, q - 1, -1):
                p = t - q
                out.append(f"v_mfma_f32_16x16x32_bf16 v[{4*t}:{4*t+3}], v[{ab}:{ab+3}], v[{sb+4*p}:{sb+4*p+3}], v[{4*t}:{4*t+3}]")
                out.append(f"v_mfma_f32_16x16x32_bf16 v[{4*t}:{4*t+3}], v[{ab}:{ab+3}], v[{sb+32+4*p}:{sb+32+4*p+3}], v[{4*t}:{4*t+3}]")
        return out

    for r_ in reads(0):
        a(r_)
    for ri in range(4):
        a("s_waitcnt lgkmcnt(0)")
        R = reads(ri + 1) if ri < 3 else []
        M = mfmas(ri)
        k = 0
        for i, m in enumerate(M):
            a(m)
            if i % 2 == 1 and k < len(R):
                a(R[k]); k += 1
        assert k == len(R)
    a("s_cmp_eq_u32 s18, 0")
    a("s_cbranch_scc1 K2_NOSWAP")
    a.flush()
    for i in range(16):
        a(f"v_swap_b32 v{i}, v{16+i}")
    a.label("K2_NOSWAP")
    a.flush()
    a.nop(8)
    a("s_lshl_b32 s22, s18, 12")
    a(f"s_add_u32 s22, s22, {SC}")
    a(f"v_lshl_add_u32 v40, v{vLane}, 4, v{vBase}")
    a("v_add_u32 v41, s22, v40")
    for k in range(4):
        a(f"ds_write_b128 v41, v[{16+4*k}:{19+4*k}] offset:{1024*k}")
    a("s_xor_b32 s23, s18, 1")
    a("s_lshl_b32 s23, s23, 12")
    a(f"s_add_u32 s23, s23, {SC}")
    a("v_add_u32 v41, s23, v40")
    a(f"v_lshlrev_b32 v42, 5, v{vC}")
    a(f"v_lshl_add_u32 v42, v{vG}, 3, v42")
    a("s_lshl_b32 s22, s18, 11")
    a("v_add_u32 v42, s22, v42")
    a(f"v_add_u32 v43, v42, v{vBase}")
    a("s_lshl_b32 s22, s20, 12")
    a("v_add_u32 v42, s22, v42")
    a("s_waitcnt lgkmcnt(0)")
    a("s_barrier")
    for k in range(4):
        a(f"ds_read_b128 v[{16+4*k}:{19+4*k}], v41 offset:{1024*k}")
    for k in range(4):
        a(f"ds_read_b64 v[{48+2*k}:{49+2*k}], v43 offset:{U0+32+512*k}")
    a("s_waitcnt lgkmcnt(0)")
    for k in range(4):
        y = 4 * k
        for i in range(4):
            a(f"v_add_f32 v{y+i}, v{y+i}, v{16+y+i}")
        a(f"v_cvt_pk_bf16_f32 v{56}, v{y}, v{y+1}")
        a(f"v_cvt_pk_bf16_f32 v{57}, v{y+2}, v{y+3}")
        a(f"v_lshlrev_b32 v{y}, 16, v56")
        a(f"v_and_b32 v{y+1}, 0xffff0000, v56")
        a(f"v_lshlrev_b32 v{y+2}, 16, v57")
        a(f"v_and_b32 v{y+3}, 0xffff0000, v57")
        a(f"v_lshlrev_b32 v58, 16, v{48+2*k}")
        a(f"v_and_b32 v59, 0xffff0000, v{48+2*k}")
        a(f"v_lshlrev_b32 v60, 16, v{49+2*k}")
        a(f"v_and_b32 v61, 0xffff0000, v{49+2*k}")
        for i in range(4):
            a(f"v_mul_f32 v{58+i}, v{58+i}, v{vDsk}")
        a("v_cvt_pk_bf16_f32 v56, v58, v59")
        a("v_cvt_pk_bf16_f32 v57, v60, v61")
        a("v_lshlrev_b32 v58, 16, v56")
        a("v_and_b32 v59, 0xffff0000, v56")
        a("v_lshlrev_b32 v60, 16, v57")
        a("v_and_b32 v61, 0xffff0000, v57")
        for i in range(4):
            a(f"v_add_f32 v{y+i}, v{y+i}, v{58+i}")
        a(f"v_cvt_pk_bf16_f32 v{64+2*k}, v{y}, v{y+1}")
        a(f"v_cvt_pk_bf16_f32 v{65+2*k}, v{y+2}, v{y+3}")
        a(f"buffer_store_dwordx2 v[{64+2*k}:{65+2*k}], v42, s[52:55], 0 offen offset:{512*k}")
    a.label("K2_END")
    a("s_endpgm")
    return kernel_desc("k2_kernel", 256), f"; @launch kernel=k2_kernel grid=(256,1,1) block=(256,1,1) lds={2*DSZ}"
```

```python
from gen import *

WS_SIZE = 0x10000000


def frow(a, dst, i_reg, half, tmp):
    a(f"v_lshrrev_b32 v{tmp}, 2, v{i_reg}")
    a(f"v_lshlrev_b32 v{tmp}, 3, v{tmp}")
    a(f"v_and_b32 v{dst}, 3, v{i_reg}")
    a(f"v_add3_u32 v{dst}, v{dst}, v{tmp}, {4*half}")


def gen_k4(a):
    NST, RING, SLOT = 8, 5, 28672
    kernel_head(a, "k4_kernel")
    a("s_cmp_ge_u32 s2, 240")
    a("s_cbranch_scc1 K4_END")
    a(f"s_load_dwordx2 s[4:5], s[0:1], {KA_WS}")
    a(f"s_load_dwordx2 s[6:7], s[0:1], {KA_B1}")
    a("s_and_b32 s20, s2, 7")
    a("s_lshl_b32 s20, s20, 1")
    a("s_bfe_u32 s21, s2, 0x10003")
    a("s_add_u32 s20, s20, s21")
    a("s_lshr_b32 s21, s2, 4")
    a("s_lshl_b32 s20, s20, 7")
    a("s_mul_i32 s21, s21, 96")
    a("v_lshrrev_b32 v1, 6, v0")
    a("v_readfirstlane_b32 s22, v1")
    a("v_and_b32 v2, 63, v0")
    a("v_and_b32 v3, 15, v2")
    a("v_lshrrev_b32 v4, 4, v2")
    a("s_waitcnt lgkmcnt(0)")
    srd(a, 8, 4, 5, WS_SIZE)
    srd(a, 12, 6, 7, F * 2)
    frow(a, 5, 3, 0, 7)
    frow(a, 6, 3, 1, 7)
    for j in range(7):
        a(f"v_mov_b32 v{8+j}, 0")
    for w in range(4):
        a(f"s_cmp_lg_u32 s22, {w}")
        a(f"s_cbranch_scc1 K4_PW{w}")
        for j in range(7):
            pi = w + 4 * j
            ks, item = divmod(pi, 14)
            if item < 6:
                a(f"s_add_u32 s23, s21, {32*(item>>1)}")
                a(f"v_add_u32 v7, s23, v{5+(item&1)}")
                a("v_lshlrev_b32 v7, 10, v7")
                a(f"v_lshl_add_u32 v7, v4, 4, v7")
                a(f"v_add_u32 v{8+j}, {WS_W1T + ks*64}, v7")
            else:
                a(f"s_add_u32 s23, s20, {16*(item-6)}")
                a("v_add_u32 v7, s23, v3")
                a("v_lshlrev_b32 v7, 10, v7")
                a(f"v_lshl_add_u32 v7, v4, 4, v7")
                a(f"v_add_u32 v{8+j}, {WS_ZZ + ks*64}, v7")
        a.label(f"K4_PW{w}")
    a("s_lshl_b32 s24, s22, 10")

    def issue(st):
        slot = st % RING
        a(f"s_mov_b32 s25, {st*128}")
        for j in range(7):
            a(f"s_add_u32 m0, s24, {slot*SLOT + 4096*j}")
            a(f"buffer_load_dwordx4 v{8+j}, s[8:11], s25 offen lds")

    for st in range(RING):
        issue(st)
    a("v_lshlrev_b32 v7, 3, v4")
    a("v_add_u32 v7, s21, v7")
    a("v_lshlrev_b32 v7, 1, v7")
    for P in range(3):
        a(f"buffer_load_dwordx4 v[{16+4*P}:{19+4*P}], v7, s[12:15], 0 offen offset:{64*P}")
    for i in range(48):
        a(f"v_mov_b32 v{32+i}, 0")
    a("v_lshlrev_b32 v28, 4, v2")
    a("s_lshl_b32 s26, s22, 11")
    waits = [28 + 3, 21 + 3, 21 + 3, 21 + 3, 21, 14, 7, 0]
    waits = [31, 24, 24, 24, 24, 14, 7, 0]
    for st in range(NST):
        slot = st % RING
        a(f"s_waitcnt vmcnt({waits[st]})")
        a("s_barrier")
        if 1 <= st and st + 4 < NST:
            issue(st + 4)
        a(f"v_add_u32 v29, {slot*SLOT}, v28")
        a("v_add_u32 v30, s26, v29")
        for ks in range(2):
            for ta in range(6):
                b = 80 + 32 * ks + 4 * ta
                a(f"ds_read_b128 v[{b}:{b+3}], v29 offset:{(ks*14+ta)*1024}")
            for tb in range(2):
                b = 80 + 32 * ks + 24 + 4 * tb
                a(f"ds_read_b128 v[{b}:{b+3}], v30 offset:{(ks*14+6+tb)*1024}")
        for ks in range(2):
            a(f"s_waitcnt lgkmcnt({8 if ks == 0 else 0})")
            for tb in range(2):
                for ta in range(6):
                    acc = 32 + 4 * (tb * 6 + ta)
                    A = 80 + 32 * ks + 4 * ta
                    B = 80 + 32 * ks + 24 + 4 * tb
                    a(f"v_mfma_f32_16x16x32_bf16 v[{acc}:{acc+3}], v[{A}:{A+3}], v[{B}:{B+3}], v[{acc}:{acc+3}]")
    a("s_mov_b32 s27, 0x40135761")
    a("s_mov_b32 s28, 0x3dd2d3e7")
    a("v_mov_b32 v31, s27")
    a("s_lshl_b32 s23, s22, 5")
    a("s_add_u32 s23, s23, s20")
    a("v_add_u32 v7, s23, v3")
    a(f"s_mov_b32 s23, {F*2}")
    a("v_mul_lo_u32 v7, v7, s23")
    a("v_lshlrev_b32 v8, 3, v4")
    a("v_add_u32 v8, s21, v8")
    a("v_lshl_add_u32 v7, v8, 1, v7")
    a(f"v_add_u32 v7, {WS_HH}, v7")
    a(f"v_add_u32 v8, {16*F*2}, v7")
    for P in range(3):
        if P > 0:
            a(f"s_add_u32 s23, s21, {32*P}")
            a(f"s_cmp_ge_u32 s23, {F}")
            a("s_cbranch_scc1 K4_END")
        unpack_to = 80
        for k in range(4):
            a(f"v_lshlrev_b32 v{unpack_to+2*k}, 16, v{16+4*P+k}")
            a(f"v_and_b32 v{unpack_to+2*k+1}, 0xffff0000, v{16+4*P+k}")
        for tb in range(2):
            e0 = 32 + 4 * (tb * 6 + 2 * P)
            X = 88
            for k in range(4):
                a(f"v_cvt_pk_bf16_f32 v{96+k}, v{e0+2*k}, v{e0+2*k+1}")
            for k in range(4):
                a(f"v_lshlrev_b32 v{X+2*k}, 16, v{96+k}")
                a(f"v_and_b32 v{X+2*k+1}, 0xffff0000, v{96+k}")
            for i in range(8):
                a(f"v_add_f32 v{X+i}, v{X+i}, v{80+i}")
            for k in range(4):
                a(f"v_cvt_pk_bf16_f32 v{96+k}, v{X+2*k}, v{X+2*k+1}")
            for k in range(4):
                a(f"v_lshlrev_b32 v{X+2*k}, 16, v{96+k}")
                a(f"v_and_b32 v{X+2*k+1}, 0xffff0000, v{96+k}")
            Y = 100
            for i in range(8):
                a(f"v_mul_f32 v{Y+i}, v{X+i}, v{X+i}")
            for i in range(8):
                a(f"v_fma_f32 v{Y+i}, v{Y+i}, s28, v31")
            for i in range(8):
                a(f"v_mul_f32 v{Y+i}, v{Y+i}, v{X+i}")
            for i in range(8):
                a(f"v_exp_f32 v{Y+i}, -v{Y+i}")
            for i in range(8):
                a(f"v_add_f32 v{Y+i}, 1.0, v{Y+i}")
            for i in range(8):
                a(f"v_rcp_f32 v{Y+i}, v{Y+i}")
            for i in range(8):
                a(f"v_mul_f32 v{Y+i}, v{Y+i}, v{X+i}")
            O = 108 + 4 * tb
            for k in range(4):
                a(f"v_cvt_pk_bf16_f32 v{O+k}, v{Y+2*k}, v{Y+2*k+1}")
            a(f"buffer_store_dwordx4 v[{O}:{O+3}], v{7+tb}, s[8:11], 0 offen offset:{64*P}")
    a.label("K4_END")
    a("s_endpgm")
    return kernel_desc("k4_kernel", 144), f"; @launch kernel=k4_kernel grid=(240,1,1) block=(256,1,1) lds={RING*SLOT}"


def gen_k5(a):
    kernel_head(a, "k5_kernel")
    a("s_cmp_ge_u32 s2, 256")
    a("s_cbranch_scc1 K5_END")
    a(f"s_load_dwordx2 s[4:5], s[0:1], {KA_WS}")
    a(f"s_load_dwordx2 s[6:7], s[0:1], {KA_B2}")
    a(f"s_load_dwordx2 s[16:17], s[0:1], {KA_OUT}")
    a("s_and_b32 s20, s2, 7")
    a("s_lshl_b32 s20, s20, 2")
    a("s_bfe_u32 s21, s2, 0x20003")
    a("s_add_u32 s20, s20, s21")
    a("s_lshr_b32 s21, s2, 5")
    a("s_lshl_b32 s20, s20, 6")
    a("s_lshl_b32 s21, s21, 6")
    a("v_lshrrev_b32 v1, 6, v0")
    a("v_readfirstlane_b32 s22, v1")
    a("v_and_b32 v2, 63, v0")
    a("v_and_b32 v3, 15, v2")
    a("v_lshrrev_b32 v4, 4, v2")
    a("s_waitcnt lgkmcnt(0)")
    srd(a, 8, 4, 5, WS_SIZE)
    srd(a, 12, 6, 7, D * 2)
    srd(a, 28, 16, 17, L * D * 2)
    frow(a, 5, 3, 0, 7)
    frow(a, 6, 3, 1, 7)
    a("s_lshl_b32 s23, s22, 6")
    a(f"s_mov_b32 s24, {F*2}")
    a("v_lshlrev_b32 v16, 4, v4")
    a("v_add_u32 v16, s23, v16")
    for ta in range(4):
        a(f"s_add_u32 s25, s21, {32*(ta>>1)}")
        a(f"v_add_u32 v7, s25, v{5+(ta&1)}")
        a("v_mul_lo_u32 v7, v7, s24")
        a(f"v_add3_u32 v{8+ta}, v7, v16, 0")
        a(f"v_add_u32 v{8+ta}, {WS_W2T}, v{8+ta}")
    for tb in range(4):
        a(f"s_add_u32 s25, s20, {16*tb}")
        a("v_add_u32 v7, s25, v3")
        a("v_mul_lo_u32 v7, v7, s24")
        a(f"v_add3_u32 v{12+tb}, v7, v16, 0")
        a(f"v_add_u32 v{12+tb}, {WS_HH}, v{12+tb}")
    NB = 3

    def issue(s):
        b = 96 + 32 * (s % NB)
        for j in range(8):
            a(f"buffer_load_dwordx4 v[{b+4*j}:{b+4*j+3}], v{8+j}, s[8:11], 0 offen offset:{256*s}")

    issue(0)
    issue(1)
    for i in range(64):
        a(f"v_mov_b32 v{32+i}, 0")
    for s in range(11):
        if s == 10:
            a("s_cmp_eq_u32 s22, 3")
            a("s_cbranch_scc1 K5_RED")
        if s + 2 < 11:
            if s + 2 == 10:
                issue(s + 2)
            else:
                issue(s + 2)
            a("s_waitcnt vmcnt(16)")
        elif s + 1 < 11:
            a("s_waitcnt vmcnt(8)")
        else:
            a("s_waitcnt vmcnt(0)")
        b = 96 + 32 * (s % NB)
        for tb in range(4):
            for ta in range(4):
                acc = 32 + 4 * (tb * 4 + ta)
                a(f"v_mfma_f32_16x16x32_bf16 v[{acc}:{acc+3}], v[{b+4*ta}:{b+4*ta+3}], v[{b+16+4*tb}:{b+16+4*tb+3}], v[{acc}:{acc+3}]")
    a.label("K5_RED")
    a.flush()
    a.nop(8)
    a("s_waitcnt vmcnt(0)")
    a("s_lshl_b32 s23, s22, 14")
    a("v_lshlrev_b32 v17, 4, v2")
    a("v_add_u32 v18, s23, v17")
    for t in range(16):
        a(f"ds_write_b128 v18, v[{32+4*t}:{35+4*t}] offset:{1024*t}")
    a("s_lshl_b32 s23, s22, 4")
    a("s_add_u32 s23, s23, s20")
    a("v_add_u32 v7, s23, v3")
    a("v_lshlrev_b32 v7, 10, v7")
    a("v_lshlrev_b32 v8, 3, v4")
    a("v_add_u32 v8, s21, v8")
    a("v_lshlrev_b32 v8, 1, v8")
    a("v_add_u32 v7, v7, v8")
    a(f"v_add_u32 v9, {WS_HR}, v7")
    for P in range(2):
        a(f"buffer_load_dwordx4 v[{160+4*P}:{163+4*P}], v9, s[8:11], 0 offen offset:{64*P}")
        a(f"buffer_load_dwordx4 v[{168+4*P}:{171+4*P}], v8, s[12:15], 0 offen offset:{64*P}")
    a("s_lshl_b32 s23, s22, 12")
    a("v_add_u32 v18, s23, v17")
    a("s_waitcnt lgkmcnt(0)")
    a("s_barrier")
    for src in range(4):
        for ta in range(4):
            b = 32 + 16 * src + 4 * ta
            a(f"ds_read_b128 v[{b}:{b+3}], v18 offset:{16384*src+1024*ta}")
    a("s_waitcnt lgkmcnt(0)")
    for i in range(16):
        a(f"v_add_f32 v{32+i}, v{32+i}, v{48+i}")
        a(f"v_add_f32 v{64+i}, v{64+i}, v{80+i}")
    for i in range(16):
        a(f"v_add_f32 v{32+i}, v{32+i}, v{64+i}")
    a("s_waitcnt vmcnt(0)")
    for P in range(2):
        e0 = 32 + 8 * P
        X, Bq, Hq = 96, 104, 112
        for k in range(4):
            a(f"v_cvt_pk_bf16_f32 v{120+k}, v{e0+2*k}, v{e0+2*k+1}")
        for k in range(4):
            a(f"v_lshlrev_b32 v{X+2*k}, 16, v{120+k}")
            a(f"v_and_b32 v{X+2*k+1}, 0xffff0000, v{120+k}")
            a(f"v_lshlrev_b32 v{Bq+2*k}, 16, v{168+4*P+k}")
            a(f"v_and_b32 v{Bq+2*k+1}, 0xffff0000, v{168+4*P+k}")
            a(f"v_lshlrev_b32 v{Hq+2*k}, 16, v{160+4*P+k}")
            a(f"v_and_b32 v{Hq+2*k+1}, 0xffff0000, v{160+4*P+k}")
        for i in range(8):
            a(f"v_add_f32 v{X+i}, v{X+i}, v{Bq+i}")
        for k in range(4):
            a(f"v_cvt_pk_bf16_f32 v{120+k}, v{X+2*k}, v{X+2*k+1}")
        for k in range(4):
            a(f"v_lshlrev_b32 v{X+2*k}, 16, v{120+k}")
            a(f"v_and_b32 v{X+2*k+1}, 0xffff0000, v{120+k}")
        for i in range(8):
            a(f"v_add_f32 v{X+i}, v{X+i}, v{Hq+i}")
        O = 124 + 4 * P
        for k in range(4):
            a(f"v_cvt_pk_bf16_f32 v{O+k}, v{X+2*k}, v{X+2*k+1}")
        a(f"buffer_store_dwordx4 v[{O}:{O+3}], v7, s[28:31], 0 offen offset:{64*P}")
    a.label("K5_END")
    a("s_endpgm")
    return kernel_desc("k5_kernel", 192), "; @launch kernel=k5_kernel grid=(256,1,1) block=(256,1,1) lds=65536"
```

```python
import sys
from asmlib import Asm

KA_X, KA_LOGA, KA_AIM, KA_CRE, KA_CIM, KA_LOGDT, KA_DSK, KA_BX, KA_W1, KA_B1, KA_W2, KA_B2, KA_OUT, KA_DBG, KA_WS = [8 * i for i in range(15)]
WS_UT = 0x000000
WS_AT = 0x200000
WS_HR = 0x400000
WS_ZZ = 0x600000
WS_W1T = 0x800000
WS_W2T = 0xA00000
WS_HH = 0xC00000

L, D, N, F = 2048, 512, 128, 1376


def srd(a, d, lo, hi, nbytes, off=0):
    if off:
        a(f"s_add_u32 s{d}, s{lo}, {hex(off)}")
        a(f"s_addc_u32 s{d+1}, s{hi}, 0")
        a(f"s_and_b32 s{d+1}, s{d+1}, 0xffff")
    else:
        a(f"s_mov_b32 s{d}, s{lo}")
        a(f"s_and_b32 s{d+1}, s{hi}, 0xffff")
    a(f"s_mov_b32 s{d+2}, {hex(nbytes)}")
    a(f"s_mov_b32 s{d+3}, 0x20000")


def wave_sum(a, v, t, s):
    a(f"v_add_f32_dpp v{t}, v{v}, v{v} quad_perm:[1,0,3,2] row_mask:0xf bank_mask:0xf")
    a(f"v_add_f32_dpp v{t}, v{t}, v{t} quad_perm:[2,3,0,1] row_mask:0xf bank_mask:0xf")
    a(f"v_add_f32_dpp v{t}, v{t}, v{t} row_half_mirror row_mask:0xf bank_mask:0xf")
    a(f"v_add_f32_dpp v{t}, v{t}, v{t} row_mirror row_mask:0xf bank_mask:0xf")
    a(f"v_add_f32_dpp v{t}, v{t}, v{t} row_bcast:15 row_mask:0xa bank_mask:0xf")
    a(f"v_add_f32_dpp v{t}, v{t}, v{t} row_bcast:31 row_mask:0xc bank_mask:0xf")
    a(f"v_readlane_b32 s{s}, v{t}, 63")


def bf16r(a, d, s):
    a(f"v_cvt_pk_bf16_f32 v{d}, v{s}, v{s}")
    a(f"v_and_b32 v{d}, 0xffff0000, v{d}")


def layernorm(a, X, P, T, S):
    t0, t1, t2, t3, vm, vmb, vr = T, T + 1, T + 2, T + 3, T + 4, T + 5, T + 6
    dd = T + 7
    a(f"v_add_f32 v{t0}, v{X}, v{X+1}")
    a(f"v_add_f32 v{t1}, v{X+2}, v{X+3}")
    a(f"v_add_f32 v{t2}, v{X+4}, v{X+5}")
    a(f"v_add_f32 v{t3}, v{X+6}, v{X+7}")
    a(f"v_add_f32 v{t0}, v{t0}, v{t1}")
    a(f"v_add_f32 v{t2}, v{t2}, v{t3}")
    a(f"v_add_f32 v{t0}, v{t0}, v{t2}")
    wave_sum(a, t0, t1, S)
    a(f"v_mov_b32 v{vm}, s{S}")
    a(f"v_mul_f32 v{vm}, 0x3b000000, v{vm}")
    for i in range(8):
        a(f"v_sub_f32 v{dd+i}, v{X+i}, v{vm}")
    a(f"v_mul_f32 v{t0}, v{dd}, v{dd}")
    a(f"v_mul_f32 v{t1}, v{dd+1}, v{dd+1}")
    for i in range(2, 8, 2):
        a(f"v_fmac_f32 v{t0}, v{dd+i}, v{dd+i}")
        a(f"v_fmac_f32 v{t1}, v{dd+i+1}, v{dd+i+1}")
    a(f"v_add_f32 v{t0}, v{t0}, v{t1}")
    wave_sum(a, t0, t1, S + 1)
    bf16r(a, vmb, vm)
    a(f"v_mov_b32 v{t0}, s{S+1}")
    a(f"v_mul_f32 v{t0}, 0x3b000000, v{t0}")
    bf16r(a, t0, t0)
    a(f"v_add_f32 v{t0}, 0x3727c5ac, v{t0}")
    bf16r(a, t0, t0)
    a(f"v_sqrt_f32 v{t0}, v{t0}")
    bf16r(a, t0, t0)
    a(f"v_rcp_f32 v{vr}, v{t0}")
    for i in range(8):
        a(f"v_sub_f32 v{dd+i}, v{X+i}, v{vmb}")
    for k in range(4):
        a(f"v_cvt_pk_bf16_f32 v{t0+k}, v{dd+2*k}, v{dd+2*k+1}")
    for k in range(4):
        a(f"v_lshlrev_b32 v{dd+2*k}, 16, v{t0+k}")
        a(f"v_and_b32 v{dd+2*k+1}, 0xffff0000, v{t0+k}")
    for i in range(8):
        a(f"v_mul_f32 v{dd+i}, v{dd+i}, v{vr}")
    for k in range(4):
        a(f"v_cvt_pk_bf16_f32 v{P+k}, v{dd+2*k}, v{dd+2*k+1}")


def unpack8(a, X, P):
    for k in range(4):
        a(f"v_lshlrev_b32 v{X+2*k}, 16, v{P+k}")
        a(f"v_and_b32 v{X+2*k+1}, 0xffff0000, v{P+k}")


def kernel_head(a, name):
    a.raw(f".globl {name}")
    a.raw(".p2align 8")
    a.raw(f".type {name},@function")
    a.label(name)


def kernel_desc(name, vgpr, sgpr=64, accum=None):
    if accum is None:
        accum = (vgpr + 3) // 4 * 4
    return f""".amdhsa_kernel {name}
  .amdhsa_next_free_vgpr {vgpr}
  .amdhsa_next_free_sgpr {sgpr}
  .amdhsa_accum_offset {accum}
  .amdhsa_group_segment_fixed_size 0
  .amdhsa_kernarg_size 120
  .amdhsa_user_sgpr_count 2
  .amdhsa_user_sgpr_kernarg_segment_ptr 1
  .amdhsa_system_sgpr_workgroup_id_x 1
  .amdhsa_float_denorm_mode_32 3
.end_amdhsa_kernel
"""


K1_NWG = 256 + 176 + 172


def gen_k1(a):
    kernel_head(a, "k1_kernel")
    a(f"s_cmp_ge_u32 s2, {K1_NWG}")
    a("s_cbranch_scc1 K1_END")
    a(f"s_load_dwordx2 s[4:5], s[0:1], {KA_X}")
    a(f"s_load_dwordx2 s[6:7], s[0:1], {KA_WS}")
    a(f"s_load_dwordx2 s[20:21], s[0:1], {KA_W1}")
    a(f"s_load_dwordx2 s[22:23], s[0:1], {KA_W2}")
    a("s_waitcnt lgkmcnt(0)")
    a("s_cmp_ge_u32 s2, 256")
    a("s_cbranch_scc1 K1_TR")
    srd(a, 8, 4, 5, 0x200000)
    srd(a, 12, 6, 7, 0x200000, WS_UT)
    a("s_lshl_b32 s3, s2, 13")
    a("v_lshlrev_b32 v1, 4, v0")
    a("v_add_u32 v1, s3, v1")
    a("buffer_load_dwordx4 v[4:7], v1, s[8:11], 0 offen")
    a("v_lshrrev_b32 v2, 6, v0")
    a("v_and_b32 v3, 63, v0")
    a("v_lshlrev_b32 v3, 4, v3")
    a("v_lshl_add_u32 v3, v2, 1, v3")
    a("s_waitcnt vmcnt(0)")
    unpack8(a, 8, 4)
    layernorm(a, 8, 16, 24, 16)
    for e in range(8):
        op = "ds_write_b16" if e % 2 == 0 else "ds_write_b16_d16_hi"
        a(f"{op} v3, v{16+e//2} offset:{e*1040}")
    a("v_and_b32 v4, 7, v0")
    a("v_mul_u32_u24 v4, 65, v4")
    a("v_lshrrev_b32 v5, 3, v0")
    a("v_add_lshl_u32 v4, v4, v5, 4")
    a("s_waitcnt lgkmcnt(0)")
    a("s_barrier")
    a("ds_read_b128 v[8:11], v4")
    a("s_lshl_b32 s3, s2, 4")
    a("v_lshlrev_b32 v5, 12, v0")
    a("v_add_u32 v5, s3, v5")
    a("s_waitcnt lgkmcnt(0)")
    a("buffer_store_dwordx4 v[8:11], v5, s[12:15], 0 offen")
    a("s_branch K1_END")
    a.label("K1_TR")
    a("s_sub_u32 s3, s2, 256")
    a("s_cmp_ge_u32 s3, 176")
    a("s_cbranch_scc1 K1_TR2")
    a("s_and_b32 s24, s3, 15")
    a("s_lshr_b32 s25, s3, 4")
    srd(a, 8, 20, 21, D * F * 2)
    srd(a, 12, 6, 7, D * F * 2, WS_W1T)
    a(f"s_mov_b32 s26, {F*2}")
    a(f"s_mov_b32 s27, {F}")
    a(f"s_mov_b32 s28, {D*2}")
    a("s_branch K1_TRC")
    a.label("K1_TR2")
    a("s_sub_u32 s3, s3, 176")
    a("s_lshr_b32 s24, s3, 2")
    a("s_and_b32 s25, s3, 3")
    srd(a, 8, 22, 23, D * F * 2)
    srd(a, 12, 6, 7, D * F * 2, WS_W2T)
    a(f"s_mov_b32 s26, {D*2}")
    a(f"s_mov_b32 s27, {D}")
    a(f"s_mov_b32 s28, {F*2}")
    a.label("K1_TRC")
    a("s_lshl_b32 s24, s24, 5")
    a("s_lshl_b32 s25, s25, 7")
    a("v_lshrrev_b32 v1, 4, v0")
    a("v_and_b32 v2, 15, v0")
    a("v_lshlrev_b32 v3, 3, v2")
    a("v_add_u32 v3, s25, v3")
    a("v_add_u32 v4, s24, v1")
    a("v_mul_lo_u32 v4, v4, s26")
    a("v_lshl_add_u32 v4, v3, 1, v4")
    a("v_mul_u32_u24 v5, 544, v2")
    a("v_lshl_add_u32 v5, v1, 1, v5")
    a("v_cmp_gt_u32 vcc, s27, v3")
    a("s_and_saveexec_b64 s[30:31], vcc")
    a("s_cbranch_execz K1_TR_SK1")
    a("buffer_load_dwordx4 v[8:11], v4, s[8:11], 0 offen")
    a("s_waitcnt vmcnt(0)")
    for e in range(8):
        op = "ds_write_b16" if e % 2 == 0 else "ds_write_b16_d16_hi"
        a(f"{op} v5, v{8+e//2} offset:{e*68}")
    a.label("K1_TR_SK1")
    a("s_mov_b64 exec, s[30:31]")
    a("v_lshrrev_b32 v1, 2, v0")
    a("v_and_b32 v2, 3, v0")
    a("v_mul_u32_u24 v5, 68, v1")
    a("v_lshl_add_u32 v5, v2, 4, v5")
    a("v_add_u32 v3, s25, v1")
    a("v_mul_lo_u32 v4, v3, s28")
    a("v_lshlrev_b32 v6, 3, v2")
    a("v_add_u32 v6, s24, v6")
    a("v_lshl_add_u32 v4, v6, 1, v4")
    a("s_waitcnt lgkmcnt(0)")
    a("s_barrier")
    a("v_cmp_gt_u32 vcc, s27, v3")
    a("s_and_saveexec_b64 s[30:31], vcc")
    a("s_cbranch_execz K1_TR_SK2")
    a("ds_read2_b32 v[8:9], v5 offset0:0 offset1:1")
    a("ds_read2_b32 v[10:11], v5 offset0:2 offset1:3")
    a("s_waitcnt lgkmcnt(0)")
    a("buffer_store_dwordx4 v[8:11], v4, s[12:15], 0 offen")
    a.label("K1_TR_SK2")
    a("s_mov_b64 exec, s[30:31]")
    a.label("K1_END")
    a("s_endpgm")
    return kernel_desc("k1_kernel", 48)


def gen_k3(a):
    kernel_head(a, "k3_kernel")
    a("s_cmp_ge_u32 s2, 256")
    a("s_cbranch_scc1 K3_END")
    a(f"s_load_dwordx2 s[4:5], s[0:1], {KA_X}")
    a(f"s_load_dwordx2 s[6:7], s[0:1], {KA_WS}")
    a("s_waitcnt lgkmcnt(0)")
    srd(a, 8, 4, 5, 0x200000)
    srd(a, 12, 6, 7, 0x200000, WS_AT)
    srd(a, 20, 6, 7, 0x200000, WS_HR)
    srd(a, 24, 6, 7, 0x200000, WS_ZZ)
    a("s_lshl_b32 s3, s2, 4")
    a("v_lshlrev_b32 v5, 12, v0")
    a("v_add_u32 v5, s3, v5")
    a("buffer_load_dwordx4 v[40:43], v5, s[12:15], 0 offen")
    a("s_lshl_b32 s3, s2, 13")
    a("v_lshlrev_b32 v1, 4, v0")
    a("v_add_u32 v1, s3, v1")
    a("buffer_load_dwordx4 v[4:7], v1, s[8:11], 0 offen")
    a("v_and_b32 v44, 7, v0")
    a("v_mul_u32_u24 v44, 65, v44")
    a("v_lshrrev_b32 v45, 3, v0")
    a("v_add_lshl_u32 v44, v44, v45, 4")
    a("v_lshrrev_b32 v2, 6, v0")
    a("v_and_b32 v3, 63, v0")
    a("v_lshlrev_b32 v3, 4, v3")
    a("v_lshl_add_u32 v3, v2, 1, v3")
    a("s_waitcnt vmcnt(1)")
    a("ds_write_b128 v44, v[40:43]")
    a("s_waitcnt lgkmcnt(0)")
    a("s_barrier")
    for e in range(8):
        a(f"ds_read_u16 v{48+e}, v3 offset:{e*1040}")
    a("s_waitcnt vmcnt(0)")
    unpack8(a, 8, 4)
    a("s_waitcnt lgkmcnt(0)")
    for e in range(8):
        a(f"v_lshlrev_b32 v{48+e}, 16, v{48+e}")
        a(f"v_add_f32 v{8+e}, v{8+e}, v{48+e}")
    for k in range(4):
        a(f"v_cvt_pk_bf16_f32 v{40+k}, v{8+2*k}, v{9+2*k}")
    a("buffer_store_dwordx4 v[40:43], v1, s[20:23], 0 offen")
    unpack8(a, 8, 40)
    layernorm(a, 8, 16, 24, 16)
    unpack8(a, 8, 16)
    layernorm(a, 8, 16, 24, 16)
    a("buffer_store_dwordx4 v[16:19], v1, s[24:27], 0 offen")
    a.label("K3_END")
    a("s_endpgm")
    return kernel_desc("k3_kernel", 56)


def main():
    a = Asm()
    launches = []
    descs = []
    body = Asm()
    which = sys.argv[1] if len(sys.argv) > 1 else "all"
    import gen_k2, gen_mm
    descs.append(gen_k1(body)); launches.append(f"; @launch kernel=k1_kernel grid=({K1_NWG},1,1) block=(512,1,1) lds=8704")
    d, l = gen_k2.gen_k2(body); descs.append(d); launches.append(l)
    descs.append(gen_k3(body)); launches.append("; @launch kernel=k3_kernel grid=(256,1,1) block=(512,1,1) lds=8320")
    d, l = gen_mm.gen_k4(body); descs.append(d); launches.append(l)
    d, l = gen_mm.gen_k5(body); descs.append(d); launches.append(l)
    hdr = "; S4D conv + channel MLP, generated by dev/gen.py\n" + "\n".join(launches) + "\n"
    out = hdr + '.amdgcn_target "amdgcn-amd-amdhsa--gfx950"\n.text\n' + body.text()
    out += '.section .rodata,"a"\n' + "".join(".p2align 6\n" + d for d in descs)
    open(sys.argv[2] if len(sys.argv) > 2 else "sequential_preLN__ssm_conv_s4d__mixer_channel_mlp__prompt.s", "w").write(out)


if __name__ == "__main__":
    main()
```

```python
from gen import *

U0, U1, KH, KL, PR, KC, SC, DSZ = 0, 4160, 8320, 12928, 17536, 19584, 22656, 55424
L2E = "0x3fb8aa3b"
L2E_LO = "0x32a57060"
LN2 = "0x3f317218"


def exp_acc(a, d, x, t1, t2):
    a(f"v_mul_f32 v{t1}, {L2E}, v{x}")
    a(f"v_mov_b32 v{t2}, {L2E}")
    a(f"v_fma_f32 v{t2}, v{x}, v{t2}, -v{t1}")
    a(f"v_fmac_f32 v{t2}, {L2E_LO}, v{x}")
    a(f"v_exp_f32 v{d}, v{t1}")
    a(f"v_mul_f32 v{t2}, {LN2}, v{t2}")
    a(f"v_fmac_f32 v{d}, v{d}, v{t2}")


def gen_a(a):
    kernel_head(a, "ka_kernel")
    a("s_cmp_ge_u32 s2, 256")
    a("s_cbranch_scc1 KA_END")
    a(f"s_load_dwordx4 s[4:7], s[0:1], {KA_LOGA}")
    a(f"s_load_dwordx4 s[8:11], s[0:1], {KA_CRE}")
    a(f"s_load_dwordx4 s[12:15], s[0:1], {KA_LOGDT}")
    a(f"s_load_dwordx4 s[60:63], s[0:1], {KA_DBG}")
    a(f"s_load_dwordx2 s[64:65], s[0:1], {KA_X}")
    a(f"s_load_dwordx2 s[92:93], s[0:1], {KA_W1}")
    a(f"s_load_dwordx2 s[94:95], s[0:1], {KA_W2}")
    vT, vLane, vBb, vAb, vDsk, vBase, vC, vG = 224, 225, 226, 227, 231, 232, 233, 234
    a(f"v_and_b32 v{vT}, 255, v0")
    a(f"v_and_b32 v{vLane}, 63, v0")
    a("v_lshrrev_b32 v1, 6, v0")
    a("v_readfirstlane_b32 s18, v1")
    a("s_lshr_b32 s19, s18, 2")
    a("s_and_b32 s96, s18, 3")
    a("s_lshl_b32 s20, s2, 1")
    a("s_add_u32 s20, s20, s19")
    a(f"s_mul_i32 s21, s19, {DSZ}")
    a(f"v_mov_b32 v{vBase}, s21")
    a("s_waitcnt lgkmcnt(0)")
    a("s_mov_b32 s16, s62")
    a("s_mov_b32 s17, s63")
    srd(a, 84, 64, 65, 0x200000)
    srd(a, 88, 60, 61, 0x100)
    a("s_lshl_b32 s22, s2, 13")
    a("v_lshlrev_b32 v1, 4, v0")
    a("v_add_u32 v1, s22, v1")
    a("buffer_load_dwordx4 v[112:115], v1, s[84:87], 0 offen")
    srd(a, 24, 4, 5, 0x20000)
    srd(a, 28, 6, 7, 0x20000)
    srd(a, 32, 8, 9, 0x20000)
    srd(a, 36, 10, 11, 0x20000)
    srd(a, 40, 12, 13, 0x400)
    srd(a, 44, 14, 15, 0x400)
    srd(a, 48, 16, 17, 0x200000, WS_UT)
    srd(a, 52, 16, 17, 0x200000, WS_AT)
    srd(a, 56, 16, 17, 0x400000, WS_W1T)
    a("s_lshl_b32 s22, s20, 8")
    a(f"v_and_b32 v1, 127, v{vT}")
    a("v_lshl_add_u32 v1, v1, 1, s22")
    a("buffer_load_ushort v4, v1, s[24:27], 0 offen")
    a("buffer_load_ushort v5, v1, s[28:31], 0 offen")
    a("buffer_load_ushort v6, v1, s[32:35], 0 offen")
    a("buffer_load_ushort v7, v1, s[36:39], 0 offen")
    a("s_lshl_b32 s22, s20, 1")
    a("v_mov_b32 v2, s22")
    a("buffer_load_ushort v8, v2, s[40:43], 0 offen")
    a(f"buffer_load_ushort v{vDsk}, v2, s[44:47], 0 offen")

    def pack_setup(rnd, sr, sk):
        a(f"s_add_u32 s22, s20, {512*rnd}")
        a("s_cmp_lt_u32 s22, 352")
        a(f"s_cselect_b32 s{sr}, s92, s94")
        a(f"s_cselect_b32 s{sr+1}, s93, s95")
        a(f"s_mov_b32 s{sk+2}, {D}")
        a(f"s_cselect_b32 s{sk+2}, {F}, s{sk+2}")
        a(f"s_lshl_b32 s{sk+3}, s{sk+2}, 1")
        a("s_cmp_lt_u32 s22, 352")
        a(f"s_cselect_b32 s{sk+4}, 16, 43")
        a(f"s_cselect_b32 s{sk+5}, 0, {WS_W2T-WS_W1T}")
        a(f"s_and_b32 s{sr+1}, s{sr+1}, 0xffff")
        a(f"s_mov_b32 s{sr+2}, {D*F*2}")
        a(f"s_mov_b32 s{sr+3}, 0x20000")
        a("s_and_b32 s23, s22, 15")
        a("s_lshr_b32 s97, s22, 4")
        a("s_sub_u32 s98, s22, 352")
        a("s_lshr_b32 s99, s98, 3")
        a("s_and_b32 s98, s98, 7")
        a(f"s_cselect_b32 s{sk}, s23, s99")
        a("s_cmp_lt_u32 s22, 352")
        a(f"s_cselect_b32 s{sk}, s23, s99")
        a(f"s_cselect_b32 s{sk+1}, s97, s98")
        a(f"s_lshl_b32 s{sk}, s{sk}, 5")
        a(f"s_lshl_b32 s{sk+1}, s{sk+1}, 6")

    pack_setup(0, 4, 24)
    pack_setup(1, 8, 30)
    a(f"v_lshrrev_b32 v9, 3, v{vT}")
    a(f"v_and_b32 v10, 7, v{vT}")
    for rnd, sr, sk, dreg in ((0, 4, 24, 236), (1, 8, 30, 240)):
        a("v_lshlrev_b32 v11, 3, v10")
        a(f"v_add_u32 v11, s{sk+1}, v11")
        a(f"v_add_u32 v12, s{sk}, v9")
        a(f"v_mul_lo_u32 v12, v12, s{sk+3}")
        a("v_lshl_add_u32 v12, v11, 1, v12")
        a(f"v_cmp_gt_u32 vcc, s{sk+2}, v11")
        a("v_mov_b32 v13, 0x7ffffff0")
        a("v_cndmask_b32 v12, v13, v12, vcc")
        if rnd == 1:
            a("s_cmp_ge_u32 s20, 184")
            a(f"s_cselect_b32 s{sr+2}, 0, s{sr+2}")
        a(f"buffer_load_dwordx4 v[{dreg}:{dreg+3}], v12, s[{sr}:{sr+3}], 0 offen")

    a(f"v_lshlrev_b32 v9, 3, v{vT}")
    a("v_sub_u32 v9, 2047, v9")
    a(f"v_add_u32 v15, {KC}, v{vBase}")
    for k in range(8):
        a(f"v_subrev_u32 v10, {k}, v9")
        a("v_cvt_f32_u32 v10, v10")
        a("v_cvt_pk_bf16_f32 v10, v10, v10")
        a("v_and_b32 v10, 0xffff0000, v10")
        a("v_cvt_u32_f32 v11, v10")
        a("v_bfe_u32 v10, v10, 23, 8")
        a("v_subrev_u32 v10, 134, v10")
        a("v_med3_i32 v10, v10, 0, 3")
        a("v_lshrrev_b32 v12, 7, v11")
        a("v_and_b32 v13, 7, v11")
        a("v_bfe_u32 v11, v11, 3, 4")
        a("v_sub_u32 v14, 3, v10")
        a("v_lshlrev_b32 v12, v14, v12")
        a("v_lshrrev_b32 v13, v10, v13")
        a("v_lshl_add_u32 v12, v10, 3, v12")
        a("v_add_u32 v12, v12, v13")
        a("v_lshl_add_u32 v12, v12, 4, v11")
        a(f"v_lshl_add_u32 v{16+k}, v12, 2, v15")
    a(f"v_and_b32 v{vC}, 15, v{vLane}")
    a(f"v_lshrrev_b32 v{vG}, 4, v{vLane}")
    a(f"v_cmp_le_u32 vcc, 8, v{vC}")
    a(f"v_add_u32 v9, 120, v{vC}")
    a(f"v_cndmask_b32 v44, v{vC}, v9, vcc")
    a("v_cvt_f32_u32 v44, v44")
    a(f"v_lshrrev_b32 v9, 2, v{vC}")
    a("v_lshlrev_b32 v9, 7, v9")
    a(f"v_and_b32 v10, 3, v{vC}")
    a("v_lshl_add_u32 v9, v10, 1, v9")
    a("v_add_u32 v9, 256, v9")
    a(f"v_subrev_u32 v10, 8, v{vC}")
    a("v_lshrrev_b32 v10, 1, v10")
    a("v_lshlrev_b32 v10, 7, v10")
    a(f"v_and_b32 v11, 1, v{vC}")
    a("v_lshl_add_u32 v10, v11, 2, v10")
    a("v_add_u32 v10, 512, v10")
    a("v_cndmask_b32 v45, v9, v10, vcc")
    a("v_cvt_f32_u32 v45, v45")
    a(f"v_lshlrev_b32 v9, 7, v{vC}")
    a("v_add_u32 v9, 1024, v9")
    a("v_min_u32 v9, 2048, v9")
    a("v_cvt_f32_u32 v46, v9")
    a(f"v_lshlrev_b32 v9, 3, v{vC}")
    a("v_cvt_f32_u32 v47, v9")
    a("s_lshl_b32 s22, s96, 9")
    a(f"s_add_u32 s22, s22, {PR}")
    a(f"v_lshl_add_u32 v48, v{vG}, 6, v{vBase}")
    a("v_add_u32 v48, s22, v48")

    a("s_waitcnt vmcnt(8)")
    stamp(a, 1)
    a(f"v_lshlrev_b32 v2, 4, v{vLane}")
    a("s_lshl_b32 s22, s18, 1")
    a("v_add_u32 v2, s22, v2")
    unpack8(a, 120, 112)
    layernorm(a, 120, 128, 136, 66)
    for e in range(8):
        op = "ds_write_b16" if e % 2 == 0 else "ds_write_b16_d16_hi"
        a(f"{op} v2, v{128+e//2} offset:{e*1040}")
    a("v_and_b32 v3, 7, v0")
    a("v_mul_u32_u24 v3, 65, v3")
    a("v_lshrrev_b32 v1, 3, v0")
    a("v_add_lshl_u32 v3, v3, v1, 4")
    a("s_lshl_b32 s22, s2, 13")
    a("v_lshlrev_b32 v1, 4, v0")
    a("v_add_u32 v1, s22, v1")
    a("s_waitcnt lgkmcnt(0)")
    a("s_barrier")
    a("ds_read_b128 v[120:123], v3")

    a("s_waitcnt lgkmcnt(0)")
    a("buffer_store_dwordx4 v[120:123], v1, s[48:51], 0 offen sc1")
    a("s_waitcnt vmcnt(3)")
    for r in (4, 5, 6, 7, 8, vDsk):
        a(f"v_lshlrev_b32 v{r}, 16, v{r}")
    exp_acc(a, 9, 8, 10, 15)
    bf16r(a, 9, 9)
    exp_acc(a, 128, 4, 10, 15)
    bf16r(a, 128, 128)
    a("v_mul_f32 v128, v128, v9")
    a("v_mul_f32 v128, 0xbfb8aa3b, v128")
    a("v_mul_f32 v129, v5, v9")
    a("v_mul_f32 v129, 0.15915494, v129")
    a("v_mul_f32 v130, v6, v9")
    a("v_add_f32 v130, v130, v130")
    a("v_mul_f32 v131, v7, v9")
    a("v_add_f32 v131, v131, v131")
    a(f"v_and_b32 v9, 127, v{vT}")
    a(f"v_lshl_add_u32 v9, v9, 4, v{vBase}")
    a(f"ds_write_b128 v9, v[128:131] offset:{PR}")
    for i in range(12):
        a(f"v_mov_b32 v{96+i}, 0")
    a("s_waitcnt lgkmcnt(0)")
    a("s_barrier")
    stamp(a, 2)

    def kgen(ms):
        out = []
        for nn in range(4):
            pb = 128 + 4 * nn
            ent = [(47, None, 60, 64), (44, 1, 68, 72), (45, 1, 76, 80), (46, 1, 84, 88)]
            for n_, (y, isA, oh, ol) in enumerate(ent):
                e = 144 + 8 * n_
                c, o, h = e + 2, e + 4, e + 6
                yp = (y // 2) * 2
                sel = "op_sel_hi:[1,0]" if y % 2 == 0 else "op_sel:[0,1] op_sel_hi:[1,1]"
                out.append(f"v_pk_mul_f32 v[{e}:{e+1}], v[{pb}:{pb+1}], v[{yp}:{yp+1}] {sel}")
                out.append(f"v_exp_f32 v{e}, v{e}")
                out.append(f"v_fract_f32 v{e+1}, v{e+1}")
                out.append(f"v_cos_f32 v{c}, v{e+1}")
                out.append(f"v_sin_f32 v{c+1}, v{e+1}")
                if not isA:
                    out.append(f"v_pk_mul_f32 v[{o}:{o+1}], v[{c}:{c+1}], v[{e}:{e+1}] op_sel_hi:[1,0]")
                else:
                    out.append(f"v_pk_mul_f32 v[{c}:{c+1}], v[{c}:{c+1}], v[{e}:{e+1}] op_sel_hi:[1,0]")
                    out.append(f"v_pk_mul_f32 v[{o}:{o+1}], v[{pb+2}:{pb+3}], v[{c}:{c+1}] op_sel_hi:[1,0]")
                    out.append(f"v_pk_fma_f32 v[{o}:{o+1}], v[{pb+2}:{pb+3}], v[{c}:{c+1}], v[{o}:{o+1}] op_sel:[1,1,0] op_sel_hi:[0,1,1] neg_lo:[1,0,0] neg_hi:[1,0,1]")
                out.append(f"v_cvt_pk_bf16_f32 v{oh+nn}, v{o}, v{o+1}")
                out.append(f"v_lshlrev_b32 v{h}, 16, v{oh+nn}")
                out.append(f"v_and_b32 v{h+1}, 0xffff0000, v{oh+nn}")
                out.append(f"v_pk_add_f32 v[{o}:{o+1}], v[{o}:{o+1}], v[{h}:{h+1}] neg_lo:[0,1] neg_hi:[0,1]")
                out.append(f"v_cvt_pk_bf16_f32 v{ol+nn}, v{o}, v{o+1}")
        return out

    for ms in range(2):
        for nn in range(4):
            a(f"ds_read_b128 v[{128+4*nn}:{131+4*nn}], v48 offset:{256*ms+16*nn}")
        a("s_waitcnt lgkmcnt(0)")
        for ins in kgen(ms):
            a(ins)
        for gmm in range(3):
            ac = 96 + 4 * gmm
            Ah, Al = 68 + 8 * gmm, 72 + 8 * gmm
            a(f"v_mfma_f32_16x16x32_bf16 v[{ac}:{ac+3}], v[{Ah}:{Ah+3}], v[60:63], v[{ac}:{ac+3}]")
            a(f"v_mfma_f32_16x16x32_bf16 v[{ac}:{ac+3}], v[{Ah}:{Ah+3}], v[64:67], v[{ac}:{ac+3}]")
            a(f"v_mfma_f32_16x16x32_bf16 v[{ac}:{ac+3}], v[{Al}:{Al+3}], v[60:63], v[{ac}:{ac+3}]")
        if ms == 0:
            a("s_waitcnt vmcnt(0)")
            a("s_barrier")
            a("s_and_b32 s22, s2, 63")
            a("s_lshl_b32 s22, s22, 2")
            a("v_mov_b32 v1, s22")
            a("v_mov_b32 v2, 1")
            a("v_cmp_eq_u32 vcc, 0, v0")
            a("s_and_saveexec_b64 s[36:37], vcc")
            a("s_cbranch_execz KA_ARR")
            a("buffer_atomic_add v2, v1, s[88:91], 0 offen")
            a.label("KA_ARR")
            a("s_mov_b64 exec, s[36:37]")
    stamp(a, 3)
    a("s_mul_i32 s22, s96, 3072")
    a(f"s_add_u32 s22, s22, {SC}")
    a(f"v_lshl_add_u32 v9, v{vG}, 8, v{vBase}")
    a(f"v_lshl_add_u32 v9, v{vC}, 2, v9")
    a("v_add_u32 v9, s22, v9")
    for gmm in range(3):
        for r in range(4):
            a(f"ds_write_b32 v9, v{96+4*gmm+r} offset:{gmm*1024+r*64}")
    def pack_store(sk, lbl):
        a(f"v_add_u32 v9, s{sk+1}, v12")
        a("v_lshrrev_b32 v10, 5, v9")
        a("v_bfe_u32 v15, v9, 2, 1")
        a("v_lshl_add_u32 v10, v10, 1, v15")
        a(f"v_mul_lo_u32 v10, v10, s{sk+4}")
        a(f"s_lshr_b32 s22, s{sk}, 5")
        a("v_add_u32 v10, s22, v10")
        a("v_lshlrev_b32 v10, 10, v10")
        a("v_bfe_u32 v15, v9, 3, 2")
        a("v_and_b32 v124, 3, v9")
        a("v_lshl_add_u32 v15, v15, 2, v124")
        a("v_lshl_add_u32 v15, v13, 4, v15")
        a("v_lshl_add_u32 v10, v15, 4, v10")
        a(f"v_add_u32 v10, s{sk+5}, v10")
        a(f"v_cmp_gt_u32 vcc, s{sk+2}, v9")
        a("s_and_saveexec_b64 s[36:37], vcc")
        a(f"s_cbranch_execz {lbl}")
        a("ds_read2_b32 v[124:125], v14 offset0:0 offset1:1")
        a("ds_read2_b32 v[126:127], v14 offset0:2 offset1:3")
        a("s_waitcnt lgkmcnt(0)")
        a("buffer_store_dwordx4 v[124:127], v10, s[56:59], 0 offen")
        a.label(lbl)
        a("s_mov_b64 exec, s[36:37]")

    a(f"v_lshrrev_b32 v9, 3, v{vT}")
    a(f"v_and_b32 v10, 7, v{vT}")
    a("v_mul_u32_u24 v11, 544, v10")
    a("v_lshl_add_u32 v11, v9, 1, v11")
    a(f"v_add_u32 v11, {SC+12288}, v11")
    a(f"v_add_u32 v11, v11, v{vBase}")
    a(f"v_lshrrev_b32 v12, 2, v{vT}")
    a(f"v_and_b32 v13, 3, v{vT}")
    a("v_mul_u32_u24 v14, 68, v12")
    a("v_lshl_add_u32 v14, v13, 4, v14")
    a(f"v_add_u32 v14, {SC+12288}, v14")
    a(f"v_add_u32 v14, v14, v{vBase}")
    for e in range(8):
        op = "ds_write_b16" if e % 2 == 0 else "ds_write_b16_d16_hi"
        a(f"{op} v11, v{236+e//2} offset:{e*68}")
        a(f"{op} v11, v{240+e//2} offset:{4352+e*68}")
    a("s_waitcnt lgkmcnt(0)")
    a("s_barrier")
    pack_store(24, "KA_PS0")
    a("s_cmp_ge_u32 s20, 184")
    a("s_cbranch_scc1 KA_PS1")
    a("v_add_u32 v14, 4352, v14")
    pack_store(30, "KA_PS1x")
    a.label("KA_PS1")
    a(f"v_lshlrev_b32 v1, 2, v{vLane}")
    a("s_cmp_lg_u32 s18, 0")
    a("s_cbranch_scc1 KA_GO")
    a.label("KA_POLL")
    a("buffer_load_dword v2, v1, s[88:91], 0 offen sc1")
    a("s_waitcnt vmcnt(0)")
    a("v_cmp_ne_u32 vcc, 4, v2")
    a("s_cmp_eq_u64 vcc, 0")
    a("s_cbranch_scc1 KA_GO")
    a("s_sleep 4")
    a("s_branch KA_POLL")
    a.label("KA_GO")
    a("s_barrier")
    a("s_lshl_b32 s22, s20, 4")
    a(f"v_lshl_add_u32 v3, v{vT}, 13, s22")
    a("v_add_u32 v4, 0x2000, v3")
    a("buffer_load_dwordx4 v[32:35], v3, s[48:51], 0 offen sc1")
    a("buffer_load_dword v36, v4, s[48:51], 0 offen sc1")
    a(f"v_lshl_add_u32 v10, v{vT}, 4, v{vBase}")
    for i in range(4):
        a(f"v_mov_b32 v{60+i}, 0")
    a(f"v_cmp_gt_u32 vcc, 30, v{vT}")
    a("s_and_saveexec_b64 s[36:37], vcc")
    a("s_cbranch_execz KA_Z2")
    a(f"ds_write_b128 v10, v[60:63] offset:{KH+4096}")
    a(f"ds_write_b128 v10, v[60:63] offset:{KL+4096}")
    a.label("KA_Z2")
    a("s_mov_b64 exec, s[36:37]")
    a(f"v_lshl_add_u32 v11, v{vT}, 2, v{vBase}")
    a("s_waitcnt lgkmcnt(0)")
    a("s_barrier")
    a(f"v_add_u32 v15, {SC}, v11")
    for j in range(3):
        a(f"ds_read2st64_b32 v[{64+4*j}:{65+4*j}], v15 offset0:{4*j} offset1:{4*j+12}")
        a(f"ds_read2st64_b32 v[{66+4*j}:{67+4*j}], v15 offset0:{4*j+24} offset1:{4*j+36}")
    a("s_waitcnt lgkmcnt(0)")
    for j in range(3):
        a(f"v_add_f32 v{64+4*j}, v{64+4*j}, v{65+4*j}")
        a(f"v_add_f32 v{66+4*j}, v{66+4*j}, v{67+4*j}")
        a(f"v_add_f32 v{64+4*j}, v{64+4*j}, v{66+4*j}")
        a(f"ds_write_b32 v11, v{64+4*j} offset:{KC+1024*j}")
    a(f"v_lshrrev_b32 v9, 1, v{vG}")
    a(f"v_and_b32 v15, 1, v{vG}")
    a(f"v_sub_u32 v12, v9, v{vC}")
    a("v_lshlrev_b32 v12, 5, v12")
    a("v_lshlrev_b32 v13, 4, v15")
    a("v_sub_u32 v12, v12, v13")
    a("s_lshl_b32 s22, s96, 7")
    a(f"s_add_u32 s23, s22, {KH+496}")
    a(f"v_add3_u32 v{vBb}, v12, v{vBase}, s23")
    a(f"v_add_u32 v12, 1, v{vC}")
    a("v_and_b32 v12, 1, v12")
    a("v_lshlrev_b32 v13, 4, v9")
    a(f"v_add_u32 v13, v13, v{vC}")
    a("v_lshlrev_b32 v14, 3, v15")
    a("v_sub_u32 v13, v13, v14")
    a("v_sub_u32 v13, v13, v12")
    a("v_add_u32 v13, 9, v13")
    a("v_lshlrev_b32 v13, 1, v13")
    a("v_mul_u32_u24 v14, 4160, v12")
    a("v_add_u32 v13, v13, v14")
    a(f"v_add3_u32 v{vAb}, v13, v{vBase}, s22")
    for i in range(1, 4):
        a(f"v_add_u32 v{vAb+i}, {1024*i}, v{vAb}")
    a("s_waitcnt lgkmcnt(0)")
    a("s_barrier")
    for k in range(8):
        a(f"ds_read_b32 v{64+k}, v{16+k}")
    a("s_waitcnt lgkmcnt(0)")
    for k in range(4):
        x0, x1 = 64 + 2 * k, 65 + 2 * k
        a(f"v_cvt_pk_bf16_f32 v{96+k}, v{x0}, v{x1}")
        a(f"v_lshlrev_b32 v72, 16, v{96+k}")
        a(f"v_and_b32 v73, 0xffff0000, v{96+k}")
        a(f"v_sub_f32 v{x0}, v{x0}, v72")
        a(f"v_sub_f32 v{x1}, v{x1}, v73")
        a(f"v_cvt_pk_bf16_f32 v{100+k}, v{x0}, v{x1}")
    a(f"ds_write_b128 v10, v[96:99] offset:{KH}")
    a(f"ds_write_b128 v10, v[100:103] offset:{KL}")
    a("s_waitcnt vmcnt(0)")
    a(f"ds_write_b128 v10, v[32:35] offset:{U0+32}")
    for k in range(4):
        a(f"v_alignbit_b32 v{44+k}, v{33+k}, v{32+k}, 16")
    a(f"ds_write_b128 v10, v[44:47] offset:{U1+32}")
    for k in range(3):
        a(f"v_mov_b32 v{52+k}, 0")
    a("v_lshlrev_b32 v55, 16, v32")
    a(f"v_cmp_eq_u32 vcc, 0, v{vT}")
    a("s_and_saveexec_b64 s[36:37], vcc")
    a("s_cbranch_execz KA_Z1")
    a(f"ds_write_b128 v{vBase}, v[60:63] offset:{U0}")
    a(f"ds_write_b128 v{vBase}, v[60:63] offset:{U0+16}")
    a(f"ds_write_b128 v{vBase}, v[60:63] offset:{U1}")
    a(f"ds_write_b128 v{vBase}, v[52:55] offset:{U1+16}")
    a.label("KA_Z1")
    a("s_mov_b64 exec, s[36:37]")
    a("s_waitcnt lgkmcnt(0)")
    a("s_barrier")
    stamp(a, 4)

    def reads(ri):
        sb = 32 + 96 * ri
        aq = []
        for q in range(8):
            ab = sb + 64 + 4 * q
            o = 16 * ri + 128 * (q & 1)
            aq.append([f"ds_read2_b32 v[{ab}:{ab+1}], v{vAb+(q>>1)} offset0:{o} offset1:{o+1}",
                       f"ds_read2_b32 v[{ab+2}:{ab+3}], v{vAb+(q>>1)} offset0:{o+2} offset1:{o+3}"])
        seq = list(aq[0])
        for p in range(7, -1, -1):
            seq.append(f"ds_read_b128 v[{sb+4*p}:{sb+4*p+3}], v{vBb} offset:{512*(7-p)+64*ri}")
            seq.append(f"ds_read_b128 v[{sb+32+4*p}:{sb+32+4*p+3}], v{vBb} offset:{4608+512*(7-p)+64*ri}")
        for q in range(1, 8):
            seq += aq[q]
        return seq

    def mfmas(ri):
        sb = 32 + 96 * ri
        out = []
        for q in range(8):
            ab = sb + 64 + 4 * q
            for t in range(7, q - 1, -1):
                p = t - q
                out.append(f"v_mfma_f32_16x16x32_bf16 v[{4*t}:{4*t+3}], v[{ab}:{ab+3}], v[{sb+4*p}:{sb+4*p+3}], v[{4*t}:{4*t+3}]")
                out.append(f"v_mfma_f32_16x16x32_bf16 v[{4*t}:{4*t+3}], v[{ab}:{ab+3}], v[{sb+32+4*p}:{sb+32+4*p+3}], v[{4*t}:{4*t+3}]")
        return out

    for r_ in reads(0):
        a(r_)
    for i in range(32):
        a(f"v_mov_b32 v{i}, 0")
    for ri in range(2):
        a("s_waitcnt lgkmcnt(0)")
        R = reads(1) if ri == 0 else []
        k = 0
        for i, m in enumerate(mfmas(ri)):
            a(m)
            if i % 2 == 1 and k < len(R):
                a(R[k]); k += 1
        assert k == len(R)
    stamp(a, 5)
    a("s_lshl_b32 s22, s96, 13")
    a(f"s_add_u32 s22, s22, {SC}")
    a(f"v_lshl_add_u32 v40, v{vLane}, 4, v{vBase}")
    a("v_add_u32 v41, s22, v40")
    for t in range(8):
        a(f"ds_write_b128 v41, v[{4*t}:{4*t+3}] offset:{1024*t}")
    a("s_lshl_b32 s22, s96, 11")
    a(f"s_add_u32 s23, s22, {SC}")
    a("v_add_u32 v41, s23, v40")
    a(f"v_lshlrev_b32 v42, 5, v{vC}")
    a(f"v_lshl_add_u32 v42, v{vG}, 3, v42")
    a("s_lshl_b32 s22, s96, 10")
    a("v_add_u32 v42, s22, v42")
    a(f"v_add_u32 v43, v42, v{vBase}")
    a("s_lshl_b32 s22, s20, 12")
    a("v_add_u32 v42, s22, v42")
    a("s_waitcnt lgkmcnt(0)")
    a("s_barrier")
    for src in range(4):
        for k in range(2):
            b = 64 + 8 * src + 4 * k
            a(f"ds_read_b128 v[{b}:{b+3}], v41 offset:{8192*src+1024*k}")
    for k in range(2):
        a(f"ds_read_b64 v[{48+2*k}:{49+2*k}], v43 offset:{U0+32+512*k}")
    a("s_waitcnt lgkmcnt(0)")
    for i in range(8):
        a(f"v_add_f32 v{64+i}, v{64+i}, v{72+i}")
        a(f"v_add_f32 v{80+i}, v{80+i}, v{88+i}")
    for i in range(8):
        a(f"v_add_f32 v{i}, v{64+i}, v{80+i}")
    for k in range(2):
        y = 4 * k
        a(f"v_cvt_pk_bf16_f32 v56, v{y}, v{y+1}")
        a(f"v_cvt_pk_bf16_f32 v57, v{y+2}, v{y+3}")
        a(f"v_lshlrev_b32 v{y}, 16, v56")
        a(f"v_and_b32 v{y+1}, 0xffff0000, v56")
        a(f"v_lshlrev_b32 v{y+2}, 16, v57")
        a(f"v_and_b32 v{y+3}, 0xffff0000, v57")
        a(f"v_lshlrev_b32 v58, 16, v{48+2*k}")
        a(f"v_and_b32 v59, 0xffff0000, v{48+2*k}")
        a(f"v_lshlrev_b32 v60, 16, v{49+2*k}")
        a(f"v_and_b32 v61, 0xffff0000, v{49+2*k}")
        for i in range(4):
            a(f"v_mul_f32 v{58+i}, v{58+i}, v{vDsk}")
        a("v_cvt_pk_bf16_f32 v56, v58, v59")
        a("v_cvt_pk_bf16_f32 v57, v60, v61")
        a("v_lshlrev_b32 v58, 16, v56")
        a("v_and_b32 v59, 0xffff0000, v56")
        a("v_lshlrev_b32 v60, 16, v57")
        a("v_and_b32 v61, 0xffff0000, v57")
        for i in range(4):
            a(f"v_add_f32 v{y+i}, v{y+i}, v{58+i}")
        a(f"v_cvt_pk_bf16_f32 v{62+2*k}, v{y}, v{y+1}")
        a(f"v_cvt_pk_bf16_f32 v{63+2*k}, v{y+2}, v{y+3}")
        a(f"buffer_store_dwordx2 v[{62+2*k}:{63+2*k}], v42, s[52:55], 0 offen offset:{512*k}")
    stamp(a, 6)
    stamp_flush(a, 2, 7, 16, 17)
    a.label("KA_END")
    a("s_endpgm")
    return kernel_desc("ka_kernel", 256), f"; @launch kernel=ka_kernel grid=(256,1,1) block=(512,1,1) lds={2*DSZ}"
```

```python
from gen import *

WS_SIZE = 0x10000000


def frow(a, dst, i_reg, half, tmp):
    a(f"v_lshrrev_b32 v{tmp}, 2, v{i_reg}")
    a(f"v_lshlrev_b32 v{tmp}, 3, v{tmp}")
    a(f"v_and_b32 v{dst}, 3, v{i_reg}")
    a(f"v_add3_u32 v{dst}, v{dst}, v{tmp}, {4*half}")


def gen_k4(a):
    NST, RING, SLOT = 8, 5, 28672
    kernel_head(a, "k4_kernel")
    a("s_cmp_ge_u32 s2, 240")
    a("s_cbranch_scc1 K4_END")
    a(f"s_load_dwordx2 s[4:5], s[0:1], {KA_WS}")
    a(f"s_load_dwordx2 s[6:7], s[0:1], {KA_B1}")
    a("s_and_b32 s20, s2, 7")
    a("s_lshl_b32 s20, s20, 1")
    a("s_bfe_u32 s21, s2, 0x10003")
    a("s_add_u32 s20, s20, s21")
    a("s_lshr_b32 s21, s2, 4")
    a("s_lshl_b32 s20, s20, 7")
    a("s_mul_i32 s21, s21, 96")
    a("v_lshrrev_b32 v1, 6, v0")
    a("v_readfirstlane_b32 s22, v1")
    a("v_and_b32 v2, 63, v0")
    a("v_and_b32 v3, 15, v2")
    a("v_lshrrev_b32 v4, 4, v2")
    a("s_waitcnt lgkmcnt(0)")
    srd(a, 8, 4, 5, WS_SIZE)
    srd(a, 12, 6, 7, F * 2)
    a("v_lshlrev_b32 v28, 4, v2")
    a("s_mul_i32 s30, s21, 0x5555556")
    a("s_lshr_b32 s30, s2, 4")
    a("s_mul_i32 s30, s30, 6")
    a("s_lshl_b32 s30, s30, 14")
    a(f"s_add_u32 s30, s30, {WS_W1T}")
    a("s_lshl_b32 s31, s20, 10")
    a(f"s_add_u32 s31, s31, {WS_ZZ}")
    for j in range(7):
        a(f"s_mov_b32 s{32+j}, 0")
    for w in range(4):
        a(f"s_cmp_lg_u32 s22, {w}")
        a(f"s_cbranch_scc1 K4_PW{w}")
        for j in range(7):
            pi = w + 4 * j
            ks, item = divmod(pi, 14)
            if item < 6:
                a(f"s_add_u32 s{32+j}, s30, {item*16384 + ks*1024}")
            else:
                a(f"s_add_u32 s{32+j}, s31, {(item-6)*16384 + ks*1024}")
        a.label(f"K4_PW{w}")
    a("s_lshl_b32 s24, s22, 10")
    if os.environ.get("NOROT"):
        a("s_mov_b32 s29, 0")
    else:
        a("s_lshr_b32 s29, s2, 4")
        a("s_and_b32 s29, s29, 7")

    def issue(st):
        slot = st % RING
        a(f"s_add_u32 s25, s29, {st}")
        a("s_and_b32 s25, s25, 7")
        a("s_lshl_b32 s25, s25, 11")
        for j in range(7):
            a(f"s_add_u32 s39, s{32+j}, s25")
            a(f"s_add_u32 m0, s24, {slot*SLOT + 4096*j}")
            a(f"buffer_load_dwordx4 v28, s[8:11], s39 offen lds")

    for st in range(RING):
        issue(st)
    a("v_lshlrev_b32 v7, 3, v4")
    a("v_add_u32 v7, s21, v7")
    a("v_lshlrev_b32 v7, 1, v7")
    for P in range(3):
        a(f"buffer_load_dwordx4 v[{16+4*P}:{19+4*P}], v7, s[12:15], 0 offen offset:{64*P}")
    for i in range(48):
        a(f"v_mov_b32 v{32+i}, 0")
    a("s_lshl_b32 s26, s22, 11")
    waits = [28 + 3, 21 + 3, 21 + 3, 21 + 3, 21, 14, 7, 0]
    waits = [31, 24, 24, 24, 24, 14, 7, 0]
    for st in range(NST):
        slot = st % RING
        a(f"s_waitcnt vmcnt({waits[st]})")
        a("s_barrier")
        if st in (0, 1, 4, 7):
            stamp(a, {0: 1, 1: 2, 4: 3, 7: 4}[st])
        if 1 <= st and st + 4 < NST:
            issue(st + 4)
        a(f"v_add_u32 v29, {slot*SLOT}, v28")
        a("v_add_u32 v30, s26, v29")
        for ks in range(2):
            for ta in range(6):
                b = 80 + 32 * ks + 4 * ta
                a(f"ds_read_b128 v[{b}:{b+3}], v29 offset:{(ks*14+ta)*1024}")
            for tb in range(2):
                b = 80 + 32 * ks + 24 + 4 * tb
                a(f"ds_read_b128 v[{b}:{b+3}], v30 offset:{(ks*14+6+tb)*1024}")
        for ks in range(2):
            a(f"s_waitcnt lgkmcnt({8 if ks == 0 else 0})")
            for tb in range(2):
                for ta in range(6):
                    acc = 32 + 4 * (tb * 6 + ta)
                    A = 80 + 32 * ks + 4 * ta
                    B = 80 + 32 * ks + 24 + 4 * tb
                    a(f"v_mfma_f32_16x16x32_bf16 v[{acc}:{acc+3}], v[{A}:{A+3}], v[{B}:{B+3}], v[{acc}:{acc+3}]")
    stamp(a, 5)
    a("s_mov_b32 s27, 0x40135761")
    a("s_mov_b32 s28, 0x3dd2d3e7")
    a("v_mov_b32 v31, s27")
    a("s_lshr_b32 s23, s20, 4")
    a("s_lshl_b32 s29, s22, 1")
    a("s_add_u32 s23, s23, s29")
    a("s_mul_i32 s23, s23, 43")
    a("s_lshr_b32 s29, s2, 4")
    a("s_mul_i32 s29, s29, 3")
    a("s_add_u32 s23, s23, s29")
    a("s_lshl_b32 s23, s23, 10")
    a(f"s_add_u32 s23, s23, {WS_HH}")
    a("v_add_u32 v7, s23, v28")
    a(f"v_add_u32 v8, {43*1024}, v7")
    for P in range(3):
        if P > 0:
            a(f"s_add_u32 s23, s21, {32*P}")
            a(f"s_cmp_ge_u32 s23, {F}")
            a("s_cbranch_scc1 K4_FIN")
        unpack_to = 80
        for k in range(4):
            a(f"v_lshlrev_b32 v{unpack_to+2*k}, 16, v{16+4*P+k}")
            a(f"v_and_b32 v{unpack_to+2*k+1}, 0xffff0000, v{16+4*P+k}")
        for tb in range(2):
            e0 = 32 + 4 * (tb * 6 + 2 * P)
            X = 88
            for k in range(4):
                a(f"v_cvt_pk_bf16_f32 v{96+k}, v{e0+2*k}, v{e0+2*k+1}")
            for k in range(4):
                a(f"v_lshlrev_b32 v{X+2*k}, 16, v{96+k}")
                a(f"v_and_b32 v{X+2*k+1}, 0xffff0000, v{96+k}")
            for i in range(8):
                a(f"v_add_f32 v{X+i}, v{X+i}, v{80+i}")
            for k in range(4):
                a(f"v_cvt_pk_bf16_f32 v{96+k}, v{X+2*k}, v{X+2*k+1}")
            for k in range(4):
                a(f"v_lshlrev_b32 v{X+2*k}, 16, v{96+k}")
                a(f"v_and_b32 v{X+2*k+1}, 0xffff0000, v{96+k}")
            Y = 100
            for i in range(8):
                a(f"v_mul_f32 v{Y+i}, v{X+i}, v{X+i}")
            for i in range(8):
                a(f"v_fma_f32 v{Y+i}, v{Y+i}, s28, v31")
            for i in range(8):
                a(f"v_mul_f32 v{Y+i}, v{Y+i}, v{X+i}")
            for i in range(8):
                a(f"v_exp_f32 v{Y+i}, -v{Y+i}")
            for i in range(8):
                a(f"v_add_f32 v{Y+i}, 1.0, v{Y+i}")
            for i in range(8):
                a(f"v_rcp_f32 v{Y+i}, v{Y+i}")
            for i in range(8):
                a(f"v_mul_f32 v{Y+i}, v{Y+i}, v{X+i}")
            O = 108 + 4 * tb
            for k in range(4):
                a(f"v_cvt_pk_bf16_f32 v{O+k}, v{Y+2*k}, v{Y+2*k+1}")
            a(f"buffer_store_dwordx4 v[{O}:{O+3}], v{7+tb}, s[8:11], 0 offen offset:{1024*P}")
    a.label("K4_FIN")
    stamp(a, 6)
    if STAMPS:
        a("s_waitcnt vmcnt(0)")
    stamp(a, 7)
    stamp_flush(a, 4, 8, 4, 5)
    a.label("K4_END")
    a("s_endpgm")
    return kernel_desc("k4_kernel", 144), f"; @launch kernel=k4_kernel grid=(240,1,1) block=(256,1,1) lds={RING*SLOT}"


def gen_k5(a):
    kernel_head(a, "k5_kernel")
    a("s_cmp_ge_u32 s2, 256")
    a("s_cbranch_scc1 K5_END")
    a(f"s_load_dwordx2 s[4:5], s[0:1], {KA_WS}")
    a(f"s_load_dwordx2 s[6:7], s[0:1], {KA_B2}")
    a(f"s_load_dwordx2 s[16:17], s[0:1], {KA_OUT}")
    a("s_and_b32 s20, s2, 7")
    a("s_lshl_b32 s20, s20, 2")
    a("s_bfe_u32 s21, s2, 0x20003")
    a("s_add_u32 s20, s20, s21")
    a("s_lshr_b32 s21, s2, 5")
    a("s_lshl_b32 s20, s20, 6")
    a("s_lshl_b32 s21, s21, 6")
    a("v_lshrrev_b32 v1, 6, v0")
    a("v_readfirstlane_b32 s22, v1")
    a("v_and_b32 v2, 63, v0")
    a("v_and_b32 v3, 15, v2")
    a("v_lshrrev_b32 v4, 4, v2")
    a("s_waitcnt lgkmcnt(0)")
    srd(a, 8, 4, 5, WS_SIZE)
    srd(a, 12, 6, 7, D * 2)
    srd(a, 28, 16, 17, L * D * 2)
    a("v_lshlrev_b32 v17, 4, v2")
    a("s_lshr_b32 s23, s21, 4")
    a(f"s_mul_i32 s23, s23, {43*1024}")
    a(f"s_add_u32 s32, s23, {WS_W2T}")
    a("s_lshr_b32 s23, s20, 4")
    a(f"s_mul_i32 s23, s23, {43*1024}")
    a(f"s_add_u32 s33, s23, {WS_HH}")
    a("s_cmp_eq_u32 s22, 3")
    a("s_cselect_b32 s34, 10, 11")
    if os.environ.get("NOROT"):
        a("s_mov_b32 s35, 0")
    else:
        a("s_lshr_b32 s35, s2, 5")
    NB = 4

    def issue(s):
        b = 96 + 32 * (s % NB)
        a("s_lshl_b32 s36, s35, 2")
        a("s_add_u32 s36, s36, s22")
        a("s_lshl_b32 s36, s36, 10")
        a("s_add_u32 s37, s36, s32")
        a("s_add_u32 s38, s36, s33")
        for j in range(4):
            a(f"buffer_load_dwordx4 v[{b+4*j}:{b+4*j+3}], v17, s[8:11], s37 offen")
            if j < 3:
                a(f"s_add_u32 s37, s37, {43*1024}")
        for j in range(4):
            a(f"buffer_load_dwordx4 v[{b+16+4*j}:{b+16+4*j+3}], v17, s[8:11], s38 offen")
            if j < 3:
                a(f"s_add_u32 s38, s38, {43*1024}")
        a("s_add_u32 s35, s35, 1")
        a("s_cmp_ge_u32 s35, s34")
        a("s_cselect_b32 s35, 0, s35")

    issue(0)
    issue(1)
    issue(2)
    for i in range(64):
        a(f"v_mov_b32 v{32+i}, 0")
    for s in range(11):
        if s == 10:
            a("s_cmp_eq_u32 s22, 3")
            a("s_cbranch_scc1 K5_RED")
        if s + 3 < 11:
            issue(s + 3)
            a("s_waitcnt vmcnt(24)")
        else:
            a(f"s_waitcnt vmcnt({8*(10-s)})")
        if s in (0, 1, 5):
            stamp(a, {0: 1, 1: 2, 5: 3}[s])
        b = 96 + 32 * (s % NB)
        for tb in range(4):
            for ta in range(4):
                acc = 32 + 4 * (tb * 4 + ta)
                a(f"v_mfma_f32_16x16x32_bf16 v[{acc}:{acc+3}], v[{b+4*ta}:{b+4*ta+3}], v[{b+16+4*tb}:{b+16+4*tb+3}], v[{acc}:{acc+3}]")
    a.label("K5_RED")
    stamp(a, 4)
    a.flush()
    a.nop(8)
    a("s_waitcnt vmcnt(0)")
    a("s_lshl_b32 s23, s22, 14")
    a("v_add_u32 v18, s23, v17")
    for t in range(16):
        a(f"ds_write_b128 v18, v[{32+4*t}:{35+4*t}] offset:{1024*t}")
    a("s_lshl_b32 s23, s22, 4")
    a("s_add_u32 s23, s23, s20")
    a("v_add_u32 v7, s23, v3")
    a("v_lshlrev_b32 v7, 10, v7")
    a("v_lshlrev_b32 v8, 3, v4")
    a("v_add_u32 v8, s21, v8")
    a("v_lshlrev_b32 v8, 1, v8")
    a("v_add_u32 v7, v7, v8")
    a(f"v_add_u32 v9, {WS_HR}, v7")
    for P in range(2):
        a(f"buffer_load_dwordx4 v[{160+4*P}:{163+4*P}], v9, s[8:11], 0 offen offset:{64*P}")
        a(f"buffer_load_dwordx4 v[{168+4*P}:{171+4*P}], v8, s[12:15], 0 offen offset:{64*P}")
    a("s_lshl_b32 s23, s22, 12")
    a("v_add_u32 v18, s23, v17")
    a("s_waitcnt lgkmcnt(0)")
    a("s_barrier")
    stamp(a, 5)
    for src in range(4):
        for ta in range(4):
            b = 32 + 16 * src + 4 * ta
            a(f"ds_read_b128 v[{b}:{b+3}], v18 offset:{16384*src+1024*ta}")
    a("s_waitcnt lgkmcnt(0)")
    for i in range(16):
        a(f"v_add_f32 v{32+i}, v{32+i}, v{48+i}")
        a(f"v_add_f32 v{64+i}, v{64+i}, v{80+i}")
    for i in range(16):
        a(f"v_add_f32 v{32+i}, v{32+i}, v{64+i}")
    a("s_waitcnt vmcnt(0)")
    for P in range(2):
        e0 = 32 + 8 * P
        X, Bq, Hq = 96, 104, 112
        for k in range(4):
            a(f"v_cvt_pk_bf16_f32 v{120+k}, v{e0+2*k}, v{e0+2*k+1}")
        for k in range(4):
            a(f"v_lshlrev_b32 v{X+2*k}, 16, v{120+k}")
            a(f"v_and_b32 v{X+2*k+1}, 0xffff0000, v{120+k}")
            a(f"v_lshlrev_b32 v{Bq+2*k}, 16, v{168+4*P+k}")
            a(f"v_and_b32 v{Bq+2*k+1}, 0xffff0000, v{168+4*P+k}")
            a(f"v_lshlrev_b32 v{Hq+2*k}, 16, v{160+4*P+k}")
            a(f"v_and_b32 v{Hq+2*k+1}, 0xffff0000, v{160+4*P+k}")
        for i in range(8):
            a(f"v_add_f32 v{X+i}, v{X+i}, v{Bq+i}")
        for k in range(4):
            a(f"v_cvt_pk_bf16_f32 v{120+k}, v{X+2*k}, v{X+2*k+1}")
        for k in range(4):
            a(f"v_lshlrev_b32 v{X+2*k}, 16, v{120+k}")
            a(f"v_and_b32 v{X+2*k+1}, 0xffff0000, v{120+k}")
        for i in range(8):
            a(f"v_add_f32 v{X+i}, v{X+i}, v{Hq+i}")
        O = 124 + 4 * P
        for k in range(4):
            a(f"v_cvt_pk_bf16_f32 v{O+k}, v{X+2*k}, v{X+2*k+1}")
        a(f"buffer_store_dwordx4 v[{O}:{O+3}], v7, s[28:31], 0 offen offset:{64*P}")
    stamp(a, 6)
    if STAMPS:
        a("s_waitcnt vmcnt(0)")
    stamp(a, 7)
    stamp_flush(a, 5, 8, 4, 5)
    a.label("K5_END")
    a("s_endpgm")
    return kernel_desc("k5_kernel", 224), "; @launch kernel=k5_kernel grid=(256,1,1) block=(256,1,1) lds=65536"
```

```python
import sys
from asmlib import Asm

KA_X, KA_LOGA, KA_AIM, KA_CRE, KA_CIM, KA_LOGDT, KA_DSK, KA_BX, KA_W1, KA_B1, KA_W2, KA_B2, KA_OUT, KA_DBG, KA_WS = [8 * i for i in range(15)]
WS_UT = 0x000000
WS_AT = 0x200000
WS_HR = 0x400000
WS_ZZ = 0x600000
WS_W1T = 0x800000
WS_W2T = 0xA00000
WS_HH = 0xC00000

L, D, N, F = 2048, 512, 128, 1376


def srd(a, d, lo, hi, nbytes, off=0):
    if off:
        a(f"s_add_u32 s{d}, s{lo}, {hex(off)}")
        a(f"s_addc_u32 s{d+1}, s{hi}, 0")
        a(f"s_and_b32 s{d+1}, s{d+1}, 0xffff")
    else:
        a(f"s_mov_b32 s{d}, s{lo}")
        a(f"s_and_b32 s{d+1}, s{hi}, 0xffff")
    a(f"s_mov_b32 s{d+2}, {hex(nbytes)}")
    a(f"s_mov_b32 s{d+3}, 0x20000")


def wave_sum(a, v, t, s):
    a(f"v_add_f32_dpp v{t}, v{v}, v{v} quad_perm:[1,0,3,2] row_mask:0xf bank_mask:0xf")
    a(f"v_add_f32_dpp v{t}, v{t}, v{t} quad_perm:[2,3,0,1] row_mask:0xf bank_mask:0xf")
    a(f"v_add_f32_dpp v{t}, v{t}, v{t} row_half_mirror row_mask:0xf bank_mask:0xf")
    a(f"v_add_f32_dpp v{t}, v{t}, v{t} row_mirror row_mask:0xf bank_mask:0xf")
    a(f"v_add_f32_dpp v{t}, v{t}, v{t} row_bcast:15 row_mask:0xa bank_mask:0xf")
    a(f"v_add_f32_dpp v{t}, v{t}, v{t} row_bcast:31 row_mask:0xc bank_mask:0xf")
    a(f"v_readlane_b32 s{s}, v{t}, 63")


def bf16r(a, d, s):
    a(f"v_cvt_pk_bf16_f32 v{d}, v{s}, v{s}")
    a(f"v_and_b32 v{d}, 0xffff0000, v{d}")


def layernorm(a, X, P, T, S):
    t0, t1, t2, t3, vm, vmb, vr = T, T + 1, T + 2, T + 3, T + 4, T + 5, T + 6
    dd = T + 7
    a(f"v_add_f32 v{t0}, v{X}, v{X+1}")
    a(f"v_add_f32 v{t1}, v{X+2}, v{X+3}")
    a(f"v_add_f32 v{t2}, v{X+4}, v{X+5}")
    a(f"v_add_f32 v{t3}, v{X+6}, v{X+7}")
    a(f"v_add_f32 v{t0}, v{t0}, v{t1}")
    a(f"v_add_f32 v{t2}, v{t2}, v{t3}")
    a(f"v_add_f32 v{t0}, v{t0}, v{t2}")
    wave_sum(a, t0, t1, S)
    a(f"v_mov_b32 v{vm}, s{S}")
    a(f"v_mul_f32 v{vm}, 0x3b000000, v{vm}")
    for i in range(8):
        a(f"v_sub_f32 v{dd+i}, v{X+i}, v{vm}")
    a(f"v_mul_f32 v{t0}, v{dd}, v{dd}")
    a(f"v_mul_f32 v{t1}, v{dd+1}, v{dd+1}")
    for i in range(2, 8, 2):
        a(f"v_fmac_f32 v{t0}, v{dd+i}, v{dd+i}")
        a(f"v_fmac_f32 v{t1}, v{dd+i+1}, v{dd+i+1}")
    a(f"v_add_f32 v{t0}, v{t0}, v{t1}")
    wave_sum(a, t0, t1, S + 1)
    bf16r(a, vmb, vm)
    a(f"v_mov_b32 v{t0}, s{S+1}")
    a(f"v_mul_f32 v{t0}, 0x3b000000, v{t0}")
    bf16r(a, t0, t0)
    a(f"v_add_f32 v{t0}, 0x3727c5ac, v{t0}")
    bf16r(a, t0, t0)
    a(f"v_sqrt_f32 v{t0}, v{t0}")
    bf16r(a, t0, t0)
    a(f"v_rcp_f32 v{vr}, v{t0}")
    for i in range(8):
        a(f"v_sub_f32 v{dd+i}, v{X+i}, v{vmb}")
    for k in range(4):
        a(f"v_cvt_pk_bf16_f32 v{t0+k}, v{dd+2*k}, v{dd+2*k+1}")
    for k in range(4):
        a(f"v_lshlrev_b32 v{dd+2*k}, 16, v{t0+k}")
        a(f"v_and_b32 v{dd+2*k+1}, 0xffff0000, v{t0+k}")
    for i in range(8):
        a(f"v_mul_f32 v{dd+i}, v{dd+i}, v{vr}")
    for k in range(4):
        a(f"v_cvt_pk_bf16_f32 v{P+k}, v{dd+2*k}, v{dd+2*k+1}")


class Rec:
    def __init__(self):
        self.ins = []
    def __call__(self, t):
        self.ins.append(t)


def interleave(a, *recs):
    n = max(len(r.ins) for r in recs)
    for i in range(n):
        for r in recs:
            if i < len(r.ins):
                a(r.ins[i])


def unpack8(a, X, P):
    for k in range(4):
        a(f"v_lshlrev_b32 v{X+2*k}, 16, v{P+k}")
        a(f"v_and_b32 v{X+2*k+1}, 0xffff0000, v{P+k}")


import os
STAMPS = os.environ.get('STAMPS') == '1'
STAMP_BASE = 0xF000000


def stamp(a, idx):
    if STAMPS:
        a(f"s_memtime s[{70+2*idx}:{71+2*idx}]")


def stamp_flush(a, kid, n, ws_lo, ws_hi):
    if not STAMPS:
        return
    a("s_memrealtime s[68:69]")
    a("s_waitcnt lgkmcnt(0)")
    a(f"s_add_u32 s96, s{ws_lo}, {hex(STAMP_BASE + kid*0x10000)}")
    a(f"s_addc_u32 s97, s{ws_hi}, 0")
    a("s_and_b32 s97, s97, 0xffff")
    a("s_mov_b32 s98, 0x10000")
    a("s_mov_b32 s99, 0x20000")
    a("s_lshl_b32 s95, s2, 7")
    a("v_cmp_eq_u32 vcc, 0, v255")
    a("s_and_saveexec_b64 s[92:93], vcc")
    a(f"s_cbranch_execz STAMP_SK{kid}")
    a("v_mov_b32 v1, s95")
    for i in range(n + 1):
        r = 68 + 2 * i
        a(f"v_mov_b32 v2, s{r}")
        a(f"v_mov_b32 v3, s{r+1}")
        a(f"buffer_store_dwordx2 v[2:3], v1, s[96:99], 0 offen offset:{8*i}")
    a.label(f"STAMP_SK{kid}")
    a("s_mov_b64 exec, s[92:93]")


def kernel_head(a, name):
    a.raw(f".globl {name}")
    a.raw(".p2align 8")
    a.raw(f".type {name},@function")
    a.label(name)
    if STAMPS:
        a("v_mov_b32 v255, v0")
        a("s_memtime s[70:71]")


def kernel_desc(name, vgpr, sgpr=102, accum=None):
    if STAMPS:
        vgpr, accum = 256, 256
    if accum is None:
        accum = (vgpr + 3) // 4 * 4
    return f""".amdhsa_kernel {name}
  .amdhsa_next_free_vgpr {vgpr}
  .amdhsa_next_free_sgpr {sgpr}
  .amdhsa_accum_offset {accum}
  .amdhsa_group_segment_fixed_size 0
  .amdhsa_kernarg_size 120
  .amdhsa_user_sgpr_count 2
  .amdhsa_user_sgpr_kernarg_segment_ptr 1
  .amdhsa_system_sgpr_workgroup_id_x 1
  .amdhsa_float_denorm_mode_32 3
.end_amdhsa_kernel
"""


K1_NWG = 256 + 176 + 172


def gen_k1(a):
    kernel_head(a, "k1_kernel")
    a(f"s_cmp_ge_u32 s2, {K1_NWG}")
    a("s_cbranch_scc1 K1_END")
    a(f"s_load_dwordx2 s[4:5], s[0:1], {KA_X}")
    a(f"s_load_dwordx2 s[6:7], s[0:1], {KA_WS}")
    a(f"s_load_dwordx2 s[20:21], s[0:1], {KA_W1}")
    a(f"s_load_dwordx2 s[22:23], s[0:1], {KA_W2}")
    a("s_waitcnt lgkmcnt(0)")
    a("s_cmp_ge_u32 s2, 256")
    a("s_cbranch_scc1 K1_TR")
    srd(a, 8, 4, 5, 0x200000)
    srd(a, 12, 6, 7, 0x200000, WS_UT)
    a("s_lshl_b32 s3, s2, 13")
    a("v_lshlrev_b32 v1, 4, v0")
    a("v_add_u32 v1, s3, v1")
    a("buffer_load_dwordx4 v[4:7], v1, s[8:11], 0 offen")
    a("v_lshrrev_b32 v2, 6, v0")
    a("v_and_b32 v3, 63, v0")
    a("v_lshlrev_b32 v3, 4, v3")
    a("v_lshl_add_u32 v3, v2, 1, v3")
    a("s_waitcnt vmcnt(0)")
    stamp(a, 1)
    unpack8(a, 8, 4)
    layernorm(a, 8, 16, 24, 16)
    stamp(a, 2)
    for e in range(8):
        op = "ds_write_b16" if e % 2 == 0 else "ds_write_b16_d16_hi"
        a(f"{op} v3, v{16+e//2} offset:{e*1040}")
    a("v_and_b32 v4, 7, v0")
    a("v_mul_u32_u24 v4, 65, v4")
    a("v_lshrrev_b32 v5, 3, v0")
    a("v_add_lshl_u32 v4, v4, v5, 4")
    a("s_waitcnt lgkmcnt(0)")
    a("s_barrier")
    a("ds_read_b128 v[8:11], v4")
    a("s_lshl_b32 s3, s2, 4")
    a("v_lshlrev_b32 v5, 12, v0")
    a("v_add_u32 v5, s3, v5")
    a("s_waitcnt lgkmcnt(0)")
    a("buffer_store_dwordx4 v[8:11], v5, s[12:15], 0 offen")
    stamp(a, 3)
    if STAMPS:
        a("s_waitcnt vmcnt(0)")
    stamp(a, 4)
    stamp_flush(a, 1, 5, 6, 7)
    a("s_branch K1_END")
    a.label("K1_TR")
    a("s_sub_u32 s3, s2, 256")
    a("s_cmp_ge_u32 s3, 176")
    a("s_cbranch_scc1 K1_TR2")
    a("s_and_b32 s24, s3, 15")
    a("s_lshr_b32 s25, s3, 4")
    srd(a, 8, 20, 21, D * F * 2)
    srd(a, 12, 6, 7, D * F * 2, WS_W1T)
    a(f"s_mov_b32 s26, {F*2}")
    a(f"s_mov_b32 s27, {F}")
    a("s_mov_b32 s28, 16")
    a("s_branch K1_TRC")
    a.label("K1_TR2")
    a("s_sub_u32 s3, s3, 176")
    a("s_lshr_b32 s24, s3, 2")
    a("s_and_b32 s25, s3, 3")
    srd(a, 8, 22, 23, D * F * 2)
    srd(a, 12, 6, 7, D * F * 2, WS_W2T)
    a(f"s_mov_b32 s26, {D*2}")
    a(f"s_mov_b32 s27, {D}")
    a("s_mov_b32 s28, 43")
    a.label("K1_TRC")
    a("s_lshl_b32 s24, s24, 5")
    a("s_lshl_b32 s25, s25, 7")
    a("v_lshrrev_b32 v1, 4, v0")
    a("v_and_b32 v2, 15, v0")
    a("v_lshlrev_b32 v3, 3, v2")
    a("v_add_u32 v3, s25, v3")
    a("v_add_u32 v4, s24, v1")
    a("v_mul_lo_u32 v4, v4, s26")
    a("v_lshl_add_u32 v4, v3, 1, v4")
    a("v_mul_u32_u24 v5, 544, v2")
    a("v_lshl_add_u32 v5, v1, 1, v5")
    a("v_cmp_gt_u32 vcc, s27, v3")
    a("s_and_saveexec_b64 s[30:31], vcc")
    a("s_cbranch_execz K1_TR_SK1")
    a("buffer_load_dwordx4 v[8:11], v4, s[8:11], 0 offen")
    a("s_waitcnt vmcnt(0)")
    for e in range(8):
        op = "ds_write_b16" if e % 2 == 0 else "ds_write_b16_d16_hi"
        a(f"{op} v5, v{8+e//2} offset:{e*68}")
    a.label("K1_TR_SK1")
    a("s_mov_b64 exec, s[30:31]")
    a("v_lshrrev_b32 v1, 2, v0")
    a("v_and_b32 v2, 3, v0")
    a("v_mul_u32_u24 v5, 68, v1")
    a("v_lshl_add_u32 v5, v2, 4, v5")
    a("v_add_u32 v3, s25, v1")
    a("v_lshrrev_b32 v4, 5, v3")
    a("v_bfe_u32 v6, v3, 2, 1")
    a("v_lshl_add_u32 v4, v4, 1, v6")
    a("v_mul_lo_u32 v4, v4, s28")
    a("s_lshr_b32 s29, s24, 5")
    a("v_add_u32 v4, s29, v4")
    a("v_lshlrev_b32 v4, 10, v4")
    a("v_bfe_u32 v6, v3, 3, 2")
    a("v_and_b32 v7, 3, v3")
    a("v_lshl_add_u32 v6, v6, 2, v7")
    a("v_lshl_add_u32 v6, v2, 4, v6")
    a("v_lshl_add_u32 v4, v6, 4, v4")
    a("s_waitcnt lgkmcnt(0)")
    a("s_barrier")
    a("v_cmp_gt_u32 vcc, s27, v3")
    a("s_and_saveexec_b64 s[30:31], vcc")
    a("s_cbranch_execz K1_TR_SK2")
    a("ds_read2_b32 v[8:9], v5 offset0:0 offset1:1")
    a("ds_read2_b32 v[10:11], v5 offset0:2 offset1:3")
    a("s_waitcnt lgkmcnt(0)")
    a("buffer_store_dwordx4 v[8:11], v4, s[12:15], 0 offen")
    a.label("K1_TR_SK2")
    a("s_mov_b64 exec, s[30:31]")
    a.label("K1_END")
    a("s_endpgm")
    return kernel_desc("k1_kernel", 48)


def gen_k3(a):
    kernel_head(a, "k3_kernel")
    a("s_cmp_ge_u32 s2, 256")
    a("s_cbranch_scc1 K3_END")
    a("s_and_b32 s3, s2, 7")
    a("s_lshl_b32 s3, s3, 5")
    a("s_lshr_b32 s2, s2, 3")
    a("s_add_u32 s2, s2, s3")
    a(f"s_load_dwordx2 s[4:5], s[0:1], {KA_X}")
    a(f"s_load_dwordx2 s[6:7], s[0:1], {KA_WS}")
    a("s_waitcnt lgkmcnt(0)")
    srd(a, 8, 4, 5, 0x200000)
    srd(a, 12, 6, 7, 0x200000, WS_AT)
    srd(a, 20, 6, 7, 0x200000, WS_HR)
    srd(a, 24, 6, 7, 0x200000, WS_ZZ)
    a("s_lshl_b32 s3, s2, 4")
    a("v_lshlrev_b32 v5, 12, v0")
    a("v_add_u32 v5, s3, v5")
    a("buffer_load_dwordx4 v[40:43], v5, s[12:15], 0 offen")
    a("s_lshl_b32 s3, s2, 13")
    a("v_lshlrev_b32 v1, 4, v0")
    a("v_add_u32 v1, s3, v1")
    a("buffer_load_dwordx4 v[4:7], v1, s[8:11], 0 offen")
    a("v_and_b32 v44, 7, v0")
    a("v_mul_u32_u24 v44, 65, v44")
    a("v_lshrrev_b32 v45, 3, v0")
    a("v_add_lshl_u32 v44, v44, v45, 4")
    a("v_lshrrev_b32 v2, 6, v0")
    a("v_and_b32 v3, 63, v0")
    a("v_lshlrev_b32 v3, 4, v3")
    a("v_lshl_add_u32 v3, v2, 1, v3")
    a("s_waitcnt vmcnt(1)")
    stamp(a, 1)
    a("ds_write_b128 v44, v[40:43]")
    a("s_waitcnt lgkmcnt(0)")
    a("s_barrier")
    for e in range(8):
        a(f"ds_read_u16 v{48+e}, v3 offset:{e*1040}")
    a("s_waitcnt vmcnt(0)")
    unpack8(a, 8, 4)
    a("s_waitcnt lgkmcnt(0)")
    for e in range(8):
        a(f"v_lshlrev_b32 v{48+e}, 16, v{48+e}")
        a(f"v_add_f32 v{8+e}, v{8+e}, v{48+e}")
    for k in range(4):
        a(f"v_cvt_pk_bf16_f32 v{40+k}, v{8+2*k}, v{9+2*k}")
    stamp(a, 2)
    a("buffer_store_dwordx4 v[40:43], v1, s[20:23], 0 offen")
    unpack8(a, 8, 40)
    layernorm(a, 8, 16, 24, 16)
    unpack8(a, 8, 16)
    layernorm(a, 8, 16, 24, 16)
    stamp(a, 3)
    a("s_lshr_b32 s3, s2, 1")
    a("s_lshl_b32 s3, s3, 14")
    a("s_and_b32 s28, s2, 1")
    a("s_lshl_b32 s28, s28, 7")
    a("s_add_u32 s3, s3, s28")
    a("v_and_b32 v44, 63, v0")
    a("v_lshrrev_b32 v45, 2, v44")
    a("v_lshlrev_b32 v45, 10, v45")
    a("v_and_b32 v44, 3, v44")
    a("v_lshl_add_u32 v45, v44, 8, v45")
    a("v_lshl_add_u32 v45, v2, 4, v45")
    a("v_add_u32 v45, s3, v45")
    a("buffer_store_dwordx4 v[16:19], v45, s[24:27], 0 offen")
    if STAMPS:
        a("s_waitcnt vmcnt(0)")
    stamp(a, 4)
    stamp_flush(a, 3, 5, 6, 7)
    a.label("K3_END")
    a("s_endpgm")
    return kernel_desc("k3_kernel", 56)


def main():
    a = Asm()
    launches = []
    descs = []
    body = Asm()
    which = sys.argv[1] if len(sys.argv) > 1 else "all"
    import gen_a, gen_mm
    d, l = gen_a.gen_a(body); descs.append(d); launches.append(l)
    descs.append(gen_k3(body)); launches.append("; @launch kernel=k3_kernel grid=(256,1,1) block=(512,1,1) lds=8320")
    d, l = gen_mm.gen_k4(body); descs.append(d); launches.append(l)
    d, l = gen_mm.gen_k5(body); descs.append(d); launches.append(l)
    hdr = "; S4D conv + channel MLP, generated by dev/gen.py\n" + "\n".join(launches) + "\n"
    out = hdr + '.amdgcn_target "amdgcn-amd-amdhsa--gfx950"\n.text\n' + body.text()
    out += '.section .rodata,"a"\n' + "".join(".p2align 6\n" + d for d in descs)
    open(sys.argv[2] if len(sys.argv) > 2 else "sequential_preLN__ssm_conv_s4d__mixer_channel_mlp__prompt.s", "w").write(out)


if __name__ == "__main__":
    main()
```

```python
from gen import *

U0, U1, KH, KL, PR, KC, SC, PKS, DSZ = 0, 4160, 8320, 12928, 17536, 19584, 22656, 55424, 64128
L2E = "0x3fb8aa3b"
L2E_LO = "0x32a57060"
LN2 = "0x3f317218"


def exp_acc(a, d, x, t1, t2):
    a(f"v_mul_f32 v{t1}, {L2E}, v{x}")
    a(f"v_mov_b32 v{t2}, {L2E}")
    a(f"v_fma_f32 v{t2}, v{x}, v{t2}, -v{t1}")
    a(f"v_fmac_f32 v{t2}, {L2E_LO}, v{x}")
    a(f"v_exp_f32 v{d}, v{t1}")
    a(f"v_mul_f32 v{t2}, {LN2}, v{t2}")
    a(f"v_fmac_f32 v{d}, v{d}, v{t2}")


def gen_a(a):
    kernel_head(a, "ka_kernel")
    a("s_cmp_ge_u32 s2, 256")
    a("s_cbranch_scc1 KA_END")
    a(f"s_load_dwordx4 s[4:7], s[0:1], {KA_LOGA}")
    a(f"s_load_dwordx4 s[8:11], s[0:1], {KA_CRE}")
    a(f"s_load_dwordx4 s[12:15], s[0:1], {KA_LOGDT}")
    a(f"s_load_dwordx4 s[60:63], s[0:1], {KA_DBG}")
    a(f"s_load_dwordx2 s[64:65], s[0:1], {KA_X}")
    a(f"s_load_dwordx2 s[92:93], s[0:1], {KA_W1}")
    a(f"s_load_dwordx2 s[94:95], s[0:1], {KA_W2}")
    vT, vLane, vBb, vAb, vDsk, vBase, vC, vG = 224, 225, 226, 227, 231, 232, 233, 234
    a(f"v_and_b32 v{vT}, 255, v0")
    a(f"v_and_b32 v{vLane}, 63, v0")
    a("v_lshrrev_b32 v1, 6, v0")
    a("v_readfirstlane_b32 s18, v1")
    a("s_lshr_b32 s19, s18, 2")
    a("s_and_b32 s96, s18, 3")
    a("s_lshl_b32 s20, s2, 1")
    a("s_add_u32 s20, s20, s19")
    a(f"s_mul_i32 s21, s19, {DSZ}")
    a(f"v_mov_b32 v{vBase}, s21")
    a("s_waitcnt lgkmcnt(0)")
    a("s_mov_b32 s16, s62")
    a("s_mov_b32 s17, s63")
    srd(a, 84, 64, 65, 0x200000)
    srd(a, 88, 60, 61, 0x100)
    a("s_lshl_b32 s22, s2, 13")
    a("v_lshlrev_b32 v1, 4, v0")
    a("v_add_u32 v1, s22, v1")
    a("buffer_load_dwordx4 v[112:115], v1, s[84:87], 0 offen")
    srd(a, 24, 4, 5, 0x20000)
    srd(a, 28, 6, 7, 0x20000)
    srd(a, 32, 8, 9, 0x20000)
    srd(a, 36, 10, 11, 0x20000)
    srd(a, 40, 12, 13, 0x400)
    srd(a, 44, 14, 15, 0x400)
    srd(a, 48, 16, 17, 0x200000, WS_UT)
    srd(a, 52, 16, 17, 0x200000, WS_AT)
    srd(a, 56, 16, 17, 0x400000, WS_W1T)
    a("s_lshl_b32 s22, s20, 8")
    a(f"v_and_b32 v1, 127, v{vT}")
    a("v_lshl_add_u32 v1, v1, 1, s22")
    a("buffer_load_ushort v4, v1, s[24:27], 0 offen")
    a("buffer_load_ushort v5, v1, s[28:31], 0 offen")
    a("buffer_load_ushort v6, v1, s[32:35], 0 offen")
    a("buffer_load_ushort v7, v1, s[36:39], 0 offen")
    a("s_lshl_b32 s22, s20, 1")
    a("v_mov_b32 v2, s22")
    a("buffer_load_ushort v8, v2, s[40:43], 0 offen")
    a(f"buffer_load_ushort v{vDsk}, v2, s[44:47], 0 offen")

    def pack_setup(rnd, sr, sk):
        a(f"s_add_u32 s22, s20, {512*rnd}")
        a("s_cmp_lt_u32 s22, 352")
        a(f"s_cselect_b32 s{sr}, s92, s94")
        a(f"s_cselect_b32 s{sr+1}, s93, s95")
        a(f"s_mov_b32 s{sk+2}, {D}")
        a(f"s_cselect_b32 s{sk+2}, {F}, s{sk+2}")
        a(f"s_lshl_b32 s{sk+3}, s{sk+2}, 1")
        a("s_cmp_lt_u32 s22, 352")
        a(f"s_cselect_b32 s{sk+4}, 16, 43")
        a(f"s_cselect_b32 s{sk+5}, 0, {WS_W2T-WS_W1T}")
        a(f"s_and_b32 s{sr+1}, s{sr+1}, 0xffff")
        a(f"s_mov_b32 s{sr+2}, {D*F*2}")
        a(f"s_mov_b32 s{sr+3}, 0x20000")
        a("s_and_b32 s23, s22, 15")
        a("s_lshr_b32 s97, s22, 4")
        a("s_sub_u32 s98, s22, 352")
        a("s_lshr_b32 s99, s98, 3")
        a("s_and_b32 s98, s98, 7")
        a(f"s_cselect_b32 s{sk}, s23, s99")
        a("s_cmp_lt_u32 s22, 352")
        a(f"s_cselect_b32 s{sk}, s23, s99")
        a(f"s_cselect_b32 s{sk+1}, s97, s98")
        a(f"s_lshl_b32 s{sk}, s{sk}, 5")
        a(f"s_lshl_b32 s{sk+1}, s{sk+1}, 6")

    pack_setup(0, 4, 24)
    pack_setup(1, 8, 30)
    a(f"v_lshrrev_b32 v9, 3, v{vT}")
    a(f"v_and_b32 v10, 7, v{vT}")
    for rnd, sr, sk, dreg in ((0, 4, 24, 236), (1, 8, 30, 240)):
        a("v_lshlrev_b32 v11, 3, v10")
        a(f"v_add_u32 v11, s{sk+1}, v11")
        a(f"v_add_u32 v12, s{sk}, v9")
        a(f"v_mul_lo_u32 v12, v12, s{sk+3}")
        a("v_lshl_add_u32 v12, v11, 1, v12")
        a(f"v_cmp_gt_u32 vcc, s{sk+2}, v11")
        a("v_mov_b32 v13, 0x7ffffff0")
        a("v_cndmask_b32 v12, v13, v12, vcc")
        if rnd == 1:
            a("s_cmp_ge_u32 s20, 184")
            a(f"s_cselect_b32 s{sr+2}, 0, s{sr+2}")
        a(f"buffer_load_dwordx4 v[{dreg}:{dreg+3}], v12, s[{sr}:{sr+3}], 0 offen")

    a(f"v_lshlrev_b32 v9, 3, v{vT}")
    a("v_sub_u32 v9, 2047, v9")
    a(f"v_add_u32 v15, {KC}, v{vBase}")
    for k in range(8):
        a(f"v_subrev_u32 v10, {k}, v9")
        a("v_cvt_f32_u32 v10, v10")
        a("v_cvt_pk_bf16_f32 v10, v10, v10")
        a("v_and_b32 v10, 0xffff0000, v10")
        a("v_cvt_u32_f32 v11, v10")
        a("v_bfe_u32 v10, v10, 23, 8")
        a("v_subrev_u32 v10, 134, v10")
        a("v_med3_i32 v10, v10, 0, 3")
        a("v_lshrrev_b32 v12, 7, v11")
        a("v_and_b32 v13, 7, v11")
        a("v_bfe_u32 v11, v11, 3, 4")
        a("v_sub_u32 v14, 3, v10")
        a("v_lshlrev_b32 v12, v14, v12")
        a("v_lshrrev_b32 v13, v10, v13")
        a("v_lshl_add_u32 v12, v10, 3, v12")
        a("v_add_u32 v12, v12, v13")
        a("v_lshl_add_u32 v12, v12, 4, v11")
        a(f"v_lshl_add_u32 v{16+k}, v12, 2, v15")
    a(f"v_and_b32 v{vC}, 15, v{vLane}")
    a(f"v_lshrrev_b32 v{vG}, 4, v{vLane}")
    a(f"v_cmp_le_u32 vcc, 8, v{vC}")
    a(f"v_add_u32 v9, 120, v{vC}")
    a(f"v_cndmask_b32 v44, v{vC}, v9, vcc")
    a("v_cvt_f32_u32 v44, v44")
    a(f"v_lshrrev_b32 v9, 2, v{vC}")
    a("v_lshlrev_b32 v9, 7, v9")
    a(f"v_and_b32 v10, 3, v{vC}")
    a("v_lshl_add_u32 v9, v10, 1, v9")
    a("v_add_u32 v9, 256, v9")
    a(f"v_subrev_u32 v10, 8, v{vC}")
    a("v_lshrrev_b32 v10, 1, v10")
    a("v_lshlrev_b32 v10, 7, v10")
    a(f"v_and_b32 v11, 1, v{vC}")
    a("v_lshl_add_u32 v10, v11, 2, v10")
    a("v_add_u32 v10, 512, v10")
    a("v_cndmask_b32 v45, v9, v10, vcc")
    a("v_cvt_f32_u32 v45, v45")
    a(f"v_lshlrev_b32 v9, 7, v{vC}")
    a("v_add_u32 v9, 1024, v9")
    a("v_min_u32 v9, 2048, v9")
    a("v_cvt_f32_u32 v46, v9")
    a(f"v_lshlrev_b32 v9, 3, v{vC}")
    a("v_cvt_f32_u32 v47, v9")
    a("s_lshl_b32 s22, s96, 9")
    a(f"s_add_u32 s22, s22, {PR}")
    a(f"v_lshl_add_u32 v48, v{vG}, 6, v{vBase}")
    a("v_add_u32 v48, s22, v48")

    a("s_waitcnt vmcnt(8)")
    stamp(a, 1)
    a(f"v_lshlrev_b32 v2, 4, v{vLane}")
    a("s_lshl_b32 s22, s18, 1")
    a("v_add_u32 v2, s22, v2")
    unpack8(a, 120, 112)
    layernorm(a, 120, 128, 136, 66)
    for e in range(8):
        op = "ds_write_b16" if e % 2 == 0 else "ds_write_b16_d16_hi"
        a(f"{op} v2, v{128+e//2} offset:{e*1040}")
    a("v_and_b32 v3, 7, v0")
    a("v_mul_u32_u24 v3, 65, v3")
    a("v_lshrrev_b32 v1, 3, v0")
    a("v_add_lshl_u32 v3, v3, v1, 4")
    a("s_lshl_b32 s22, s2, 13")
    a("v_lshlrev_b32 v1, 4, v0")
    a("v_add_u32 v1, s22, v1")
    a("s_waitcnt lgkmcnt(0)")
    a("s_barrier")
    a("ds_read_b128 v[120:123], v3")

    a("s_waitcnt lgkmcnt(0)")
    a("buffer_store_dwordx4 v[120:123], v1, s[48:51], 0 offen sc1")
    a("s_waitcnt vmcnt(3)")
    for r in (4, 5, 6, 7, 8, vDsk):
        a(f"v_lshlrev_b32 v{r}, 16, v{r}")
    exp_acc(a, 9, 8, 10, 15)
    bf16r(a, 9, 9)
    exp_acc(a, 128, 4, 10, 15)
    bf16r(a, 128, 128)
    a("v_mul_f32 v128, v128, v9")
    a("v_mul_f32 v128, 0xbfb8aa3b, v128")
    a("v_mul_f32 v129, v5, v9")
    a("v_mul_f32 v129, 0.15915494, v129")
    a("v_mul_f32 v130, v6, v9")
    a("v_add_f32 v130, v130, v130")
    a("v_mul_f32 v131, v7, v9")
    a("v_add_f32 v131, v131, v131")
    a(f"v_and_b32 v9, 127, v{vT}")
    a(f"v_lshl_add_u32 v9, v9, 4, v{vBase}")
    a(f"ds_write_b128 v9, v[128:131] offset:{PR}")
    for i in range(12):
        a(f"v_mov_b32 v{96+i}, 0")
    a("s_waitcnt lgkmcnt(0)")
    a("s_barrier")
    stamp(a, 2)

    def kgen(ms):
        out = []
        for nn in range(4):
            pb = 128 + 4 * nn
            ent = [(47, None, 60, 64), (44, 1, 68, 72), (45, 1, 76, 80), (46, 1, 84, 88)]
            for n_, (y, isA, oh, ol) in enumerate(ent):
                e = 144 + 8 * n_
                c, o, h = e + 2, e + 4, e + 6
                yp = (y // 2) * 2
                sel = "op_sel_hi:[1,0]" if y % 2 == 0 else "op_sel:[0,1] op_sel_hi:[1,1]"
                out.append(f"v_pk_mul_f32 v[{e}:{e+1}], v[{pb}:{pb+1}], v[{yp}:{yp+1}] {sel}")
                out.append(f"v_exp_f32 v{e}, v{e}")
                out.append(f"v_fract_f32 v{e+1}, v{e+1}")
                out.append(f"v_cos_f32 v{c}, v{e+1}")
                out.append(f"v_sin_f32 v{c+1}, v{e+1}")
                if not isA:
                    out.append(f"v_pk_mul_f32 v[{o}:{o+1}], v[{c}:{c+1}], v[{e}:{e+1}] op_sel_hi:[1,0]")
                else:
                    out.append(f"v_pk_mul_f32 v[{c}:{c+1}], v[{c}:{c+1}], v[{e}:{e+1}] op_sel_hi:[1,0]")
                    out.append(f"v_pk_mul_f32 v[{o}:{o+1}], v[{pb+2}:{pb+3}], v[{c}:{c+1}] op_sel_hi:[1,0]")
                    out.append(f"v_pk_fma_f32 v[{o}:{o+1}], v[{pb+2}:{pb+3}], v[{c}:{c+1}], v[{o}:{o+1}] op_sel:[1,1,0] op_sel_hi:[0,1,1] neg_lo:[1,0,0] neg_hi:[1,0,1]")
                out.append(f"v_cvt_pk_bf16_f32 v{oh+nn}, v{o}, v{o+1}")
                out.append(f"v_lshlrev_b32 v{h}, 16, v{oh+nn}")
                out.append(f"v_and_b32 v{h+1}, 0xffff0000, v{oh+nn}")
                out.append(f"v_pk_add_f32 v[{o}:{o+1}], v[{o}:{o+1}], v[{h}:{h+1}] neg_lo:[0,1] neg_hi:[0,1]")
                out.append(f"v_cvt_pk_bf16_f32 v{ol+nn}, v{o}, v{o+1}")
        return out

    for ms in range(2):
        for nn in range(4):
            a(f"ds_read_b128 v[{128+4*nn}:{131+4*nn}], v48 offset:{256*ms+16*nn}")
        a("s_waitcnt lgkmcnt(0)")
        KG = kgen(ms)
        for ii, ins in enumerate(KG):
            a(ins)
            if ms == 0 and ii == len(KG) // 2:
                a("s_waitcnt vmcnt(0)")
                a("s_barrier")
                a("s_and_b32 s22, s2, 63")
                a("s_lshl_b32 s22, s22, 2")
                a("v_mov_b32 v1, s22")
                a("v_mov_b32 v2, 1")
                a("v_cmp_eq_u32 vcc, 0, v0")
                a("s_and_saveexec_b64 s[36:37], vcc")
                a("s_cbranch_execz KA_ARR")
                a("buffer_atomic_add v2, v1, s[88:91], 0 offen")
                a.label("KA_ARR")
                a("s_mov_b64 exec, s[36:37]")

        for gmm in range(3):
            ac = 96 + 4 * gmm
            Ah, Al = 68 + 8 * gmm, 72 + 8 * gmm
            a(f"v_mfma_f32_16x16x32_bf16 v[{ac}:{ac+3}], v[{Ah}:{Ah+3}], v[60:63], v[{ac}:{ac+3}]")
            a(f"v_mfma_f32_16x16x32_bf16 v[{ac}:{ac+3}], v[{Ah}:{Ah+3}], v[64:67], v[{ac}:{ac+3}]")
            a(f"v_mfma_f32_16x16x32_bf16 v[{ac}:{ac+3}], v[{Al}:{Al+3}], v[60:63], v[{ac}:{ac+3}]")
    stamp(a, 3)
    a("s_mul_i32 s22, s96, 3072")
    a(f"s_add_u32 s22, s22, {SC}")
    a(f"v_lshl_add_u32 v9, v{vG}, 8, v{vBase}")
    a(f"v_lshl_add_u32 v9, v{vC}, 2, v9")
    a("v_add_u32 v9, s22, v9")
    for gmm in range(3):
        for r in range(4):
            a(f"ds_write_b32 v9, v{96+4*gmm+r} offset:{gmm*1024+r*64}")
    a(f"v_lshlrev_b32 v1, 2, v{vLane}")
    a("s_cmp_lg_u32 s18, 0")
    a("s_cbranch_scc1 KA_GO")
    a.label("KA_POLL")
    a("buffer_load_dword v2, v1, s[88:91], 0 offen sc1")
    a("s_waitcnt vmcnt(0)")
    a("v_cmp_ne_u32 vcc, 4, v2")
    a("s_cmp_eq_u64 vcc, 0")
    a("s_cbranch_scc1 KA_GO")
    a("s_sleep 4")
    a("s_branch KA_POLL")
    a.label("KA_GO")
    a("s_barrier")
    a("s_lshl_b32 s22, s20, 4")
    a(f"v_lshl_add_u32 v3, v{vT}, 13, s22")
    a("v_add_u32 v4, 0x2000, v3")
    a("buffer_load_dwordx4 v[32:35], v3, s[48:51], 0 offen sc1")
    a("buffer_load_dword v36, v4, s[48:51], 0 offen sc1")
    a(f"v_lshl_add_u32 v10, v{vT}, 4, v{vBase}")
    for i in range(4):
        a(f"v_mov_b32 v{60+i}, 0")
    a(f"v_cmp_gt_u32 vcc, 30, v{vT}")
    a("s_and_saveexec_b64 s[36:37], vcc")
    a("s_cbranch_execz KA_Z2")
    a(f"ds_write_b128 v10, v[60:63] offset:{KH+4096}")
    a(f"ds_write_b128 v10, v[60:63] offset:{KL+4096}")
    a.label("KA_Z2")
    a("s_mov_b64 exec, s[36:37]")
    a(f"v_lshl_add_u32 v11, v{vT}, 2, v{vBase}")
    a("s_waitcnt lgkmcnt(0)")
    a("s_barrier")
    a(f"v_add_u32 v15, {SC}, v11")
    for j in range(3):
        a(f"ds_read2st64_b32 v[{64+4*j}:{65+4*j}], v15 offset0:{4*j} offset1:{4*j+12}")
        a(f"ds_read2st64_b32 v[{66+4*j}:{67+4*j}], v15 offset0:{4*j+24} offset1:{4*j+36}")
    a("s_waitcnt lgkmcnt(0)")
    for j in range(3):
        a(f"v_add_f32 v{64+4*j}, v{64+4*j}, v{65+4*j}")
        a(f"v_add_f32 v{66+4*j}, v{66+4*j}, v{67+4*j}")
        a(f"v_add_f32 v{64+4*j}, v{64+4*j}, v{66+4*j}")
        a(f"ds_write_b32 v11, v{64+4*j} offset:{KC+1024*j}")
    a(f"v_lshrrev_b32 v9, 1, v{vG}")
    a(f"v_and_b32 v15, 1, v{vG}")
    a(f"v_sub_u32 v12, v9, v{vC}")
    a("v_lshlrev_b32 v12, 5, v12")
    a("v_lshlrev_b32 v13, 4, v15")
    a("v_sub_u32 v12, v12, v13")
    a("s_lshl_b32 s22, s96, 7")
    a(f"s_add_u32 s23, s22, {KH+496}")
    a(f"v_add3_u32 v{vBb}, v12, v{vBase}, s23")
    a(f"v_add_u32 v12, 1, v{vC}")
    a("v_and_b32 v12, 1, v12")
    a("v_lshlrev_b32 v13, 4, v9")
    a(f"v_add_u32 v13, v13, v{vC}")
    a("v_lshlrev_b32 v14, 3, v15")
    a("v_sub_u32 v13, v13, v14")
    a("v_sub_u32 v13, v13, v12")
    a("v_add_u32 v13, 9, v13")
    a("v_lshlrev_b32 v13, 1, v13")
    a("v_mul_u32_u24 v14, 4160, v12")
    a("v_add_u32 v13, v13, v14")
    a(f"v_add3_u32 v{vAb}, v13, v{vBase}, s22")
    for i in range(1, 4):
        a(f"v_add_u32 v{vAb+i}, {1024*i}, v{vAb}")
    a("s_waitcnt lgkmcnt(0)")
    a("s_barrier")
    for k in range(8):
        a(f"ds_read_b32 v{64+k}, v{16+k}")
    a("s_waitcnt lgkmcnt(0)")
    for k in range(4):
        x0, x1 = 64 + 2 * k, 65 + 2 * k
        a(f"v_cvt_pk_bf16_f32 v{96+k}, v{x0}, v{x1}")
        a(f"v_lshlrev_b32 v72, 16, v{96+k}")
        a(f"v_and_b32 v73, 0xffff0000, v{96+k}")
        a(f"v_sub_f32 v{x0}, v{x0}, v72")
        a(f"v_sub_f32 v{x1}, v{x1}, v73")
        a(f"v_cvt_pk_bf16_f32 v{100+k}, v{x0}, v{x1}")
    a(f"ds_write_b128 v10, v[96:99] offset:{KH}")
    a(f"ds_write_b128 v10, v[100:103] offset:{KL}")
    a("s_waitcnt vmcnt(0)")
    a(f"ds_write_b128 v10, v[32:35] offset:{U0+32}")
    for k in range(4):
        a(f"v_alignbit_b32 v{44+k}, v{33+k}, v{32+k}, 16")
    a(f"ds_write_b128 v10, v[44:47] offset:{U1+32}")
    for k in range(3):
        a(f"v_mov_b32 v{52+k}, 0")
    a("v_lshlrev_b32 v55, 16, v32")
    a(f"v_cmp_eq_u32 vcc, 0, v{vT}")
    a("s_and_saveexec_b64 s[36:37], vcc")
    a("s_cbranch_execz KA_Z1")
    a(f"ds_write_b128 v{vBase}, v[60:63] offset:{U0}")
    a(f"ds_write_b128 v{vBase}, v[60:63] offset:{U0+16}")
    a(f"ds_write_b128 v{vBase}, v[60:63] offset:{U1}")
    a(f"ds_write_b128 v{vBase}, v[52:55] offset:{U1+16}")
    a.label("KA_Z1")
    a("s_mov_b64 exec, s[36:37]")
    a("s_waitcnt lgkmcnt(0)")
    a("s_barrier")
    stamp(a, 4)

    def reads(ri):
        sb = 32 + 96 * ri
        aq = []
        for q in range(8):
            ab = sb + 64 + 4 * q
            o = 16 * ri + 128 * (q & 1)
            aq.append([f"ds_read2_b32 v[{ab}:{ab+1}], v{vAb+(q>>1)} offset0:{o} offset1:{o+1}",
                       f"ds_read2_b32 v[{ab+2}:{ab+3}], v{vAb+(q>>1)} offset0:{o+2} offset1:{o+3}"])
        seq = list(aq[0])
        for p in range(7, -1, -1):
            seq.append(f"ds_read_b128 v[{sb+4*p}:{sb+4*p+3}], v{vBb} offset:{512*(7-p)+64*ri}")
            seq.append(f"ds_read_b128 v[{sb+32+4*p}:{sb+32+4*p+3}], v{vBb} offset:{4608+512*(7-p)+64*ri}")
        for q in range(1, 8):
            seq += aq[q]
        return seq

    def mfmas(ri):
        sb = 32 + 96 * ri
        out = []
        for q in range(8):
            ab = sb + 64 + 4 * q
            for t in range(7, q - 1, -1):
                p = t - q
                out.append(f"v_mfma_f32_16x16x32_bf16 v[{4*t}:{4*t+3}], v[{ab}:{ab+3}], v[{sb+4*p}:{sb+4*p+3}], v[{4*t}:{4*t+3}]")
                out.append(f"v_mfma_f32_16x16x32_bf16 v[{4*t}:{4*t+3}], v[{ab}:{ab+3}], v[{sb+32+4*p}:{sb+32+4*p+3}], v[{4*t}:{4*t+3}]")
        return out

    PK1 = [f"v_lshrrev_b32 v248, 3, v{vT}", f"v_and_b32 v249, 7, v{vT}", "v_mul_u32_u24 v244, 544, v249",
           "v_lshl_add_u32 v244, v248, 1, v244", f"v_add_u32 v244, {PKS}, v244", f"v_add_u32 v244, v244, v{vBase}",
           f"v_lshrrev_b32 v246, 2, v{vT}", f"v_and_b32 v247, 3, v{vT}", "v_mul_u32_u24 v245, 68, v246",
           "v_lshl_add_u32 v245, v247, 4, v245", f"v_add_u32 v245, {PKS}, v245", f"v_add_u32 v245, v245, v{vBase}"]
    for e in range(8):
        op = "ds_write_b16" if e % 2 == 0 else "ds_write_b16_d16_hi"
        PK1.append(f"{op} v244, v{236+e//2} offset:{e*68}")
        PK1.append(f"{op} v244, v{240+e//2} offset:{4352+e*68}")

    def pack_store(sk, off4):
        return [f"ds_read2_b32 v[252:253], v245 offset0:{off4} offset1:{off4+1}" if off4 + 3 < 256 else None,
                f"v_add_u32 v248, s{sk+1}, v246", "v_lshrrev_b32 v249, 5, v248", "v_bfe_u32 v250, v248, 2, 1",
                "v_lshl_add_u32 v249, v249, 1, v250", f"v_mul_lo_u32 v249, v249, s{sk+4}", f"s_lshr_b32 s22, s{sk}, 5",
                "v_add_u32 v249, s22, v249", "v_lshlrev_b32 v249, 10, v249", "v_bfe_u32 v250, v248, 3, 2",
                "v_and_b32 v251, 3, v248", "v_lshl_add_u32 v250, v250, 2, v251", "v_lshl_add_u32 v250, v247, 4, v250",
                "v_lshl_add_u32 v249, v250, 4, v249", f"v_add_u32 v249, s{sk+5}, v249", f"v_cmp_gt_u32 vcc, s{sk+2}, v248",
                "v_mov_b32 v250, 0x7ffffff0", "v_cndmask_b32 v249, v250, v249, vcc"]
    PK2 = []
    for rnd, sk in ((0, 24), (1, 30)):
        lst = pack_store(sk, 0)[1:]
        PK2 += lst
        if rnd == 1:
            PK2 += ["v_add_u32 v245, 4352, v245", "s_cmp_ge_u32 s20, 184", "s_cselect_b32 s38, 0, s58"]
        else:
            PK2 += ["s_mov_b32 s38, s58"]
        PK2 += ["ds_read2_b32 v[252:253], v245 offset0:0 offset1:1", "ds_read2_b32 v[254:255], v245 offset0:2 offset1:3",
                "s_waitcnt lgkmcnt(0)", "s_mov_b32 s36, s56", "s_mov_b32 s37, s57", "s_mov_b32 s39, s59",
                "buffer_store_dwordx4 v[252:255], v249, s[36:39], 0 offen", "s_nop 1"]
    for r_ in reads(0):
        a(r_)
    for i in range(32):
        a(f"v_mov_b32 v{i}, 0")
    for ri in range(2):
        a("s_waitcnt lgkmcnt(0)")
        R = reads(1) if ri == 0 else []
        k = 0
        for i, m in enumerate(mfmas(ri)):
            a(m)
            if i % 2 == 1 and k < len(R):
                a(R[k]); k += 1
            PK = PK1 if ri == 0 else PK2
            if i >= 4 and (ri == 1 or i % 2 == 0) and PK:
                a(PK.pop(0))
        assert k == len(R)
        if ri == 0:
            while PK1:
                a(PK1.pop(0))
            a("s_waitcnt lgkmcnt(0)")
            a("s_barrier")
    assert not PK2
    stamp(a, 5)
    a("s_lshl_b32 s22, s96, 13")
    a(f"s_add_u32 s22, s22, {SC}")
    a(f"v_lshl_add_u32 v40, v{vLane}, 4, v{vBase}")
    a("v_add_u32 v41, s22, v40")
    for t in range(8):
        a(f"ds_write_b128 v41, v[{4*t}:{4*t+3}] offset:{1024*t}")
    a("s_lshl_b32 s22, s96, 11")
    a(f"s_add_u32 s23, s22, {SC}")
    a("v_add_u32 v41, s23, v40")
    a(f"v_lshlrev_b32 v42, 5, v{vC}")
    a(f"v_lshl_add_u32 v42, v{vG}, 3, v42")
    a("s_lshl_b32 s22, s96, 10")
    a("v_add_u32 v42, s22, v42")
    a(f"v_add_u32 v43, v42, v{vBase}")
    a("s_lshl_b32 s22, s20, 12")
    a("v_add_u32 v42, s22, v42")
    a("s_waitcnt lgkmcnt(0)")
    a("s_barrier")
    for src in range(4):
        for k in range(2):
            b = 64 + 8 * src + 4 * k
            a(f"ds_read_b128 v[{b}:{b+3}], v41 offset:{8192*src+1024*k}")
    for k in range(2):
        a(f"ds_read_b64 v[{48+2*k}:{49+2*k}], v43 offset:{U0+32+512*k}")
    a("s_waitcnt lgkmcnt(0)")
    for i in range(8):
        a(f"v_add_f32 v{64+i}, v{64+i}, v{72+i}")
        a(f"v_add_f32 v{80+i}, v{80+i}, v{88+i}")
    for i in range(8):
        a(f"v_add_f32 v{i}, v{64+i}, v{80+i}")
    for k in range(2):
        y = 4 * k
        a(f"v_cvt_pk_bf16_f32 v56, v{y}, v{y+1}")
        a(f"v_cvt_pk_bf16_f32 v57, v{y+2}, v{y+3}")
        a(f"v_lshlrev_b32 v{y}, 16, v56")
        a(f"v_and_b32 v{y+1}, 0xffff0000, v56")
        a(f"v_lshlrev_b32 v{y+2}, 16, v57")
        a(f"v_and_b32 v{y+3}, 0xffff0000, v57")
        a(f"v_lshlrev_b32 v58, 16, v{48+2*k}")
        a(f"v_and_b32 v59, 0xffff0000, v{48+2*k}")
        a(f"v_lshlrev_b32 v60, 16, v{49+2*k}")
        a(f"v_and_b32 v61, 0xffff0000, v{49+2*k}")
        for i in range(4):
            a(f"v_mul_f32 v{58+i}, v{58+i}, v{vDsk}")
        a("v_cvt_pk_bf16_f32 v56, v58, v59")
        a("v_cvt_pk_bf16_f32 v57, v60, v61")
        a("v_lshlrev_b32 v58, 16, v56")
        a("v_and_b32 v59, 0xffff0000, v56")
        a("v_lshlrev_b32 v60, 16, v57")
        a("v_and_b32 v61, 0xffff0000, v57")
        for i in range(4):
            a(f"v_add_f32 v{y+i}, v{y+i}, v{58+i}")
        a(f"v_cvt_pk_bf16_f32 v{62+2*k}, v{y}, v{y+1}")
        a(f"v_cvt_pk_bf16_f32 v{63+2*k}, v{y+2}, v{y+3}")
        a(f"buffer_store_dwordx2 v[{62+2*k}:{63+2*k}], v42, s[52:55], 0 offen offset:{512*k}")
    stamp(a, 6)
    stamp_flush(a, 2, 7, 16, 17)
    a.label("KA_END")
    a("s_endpgm")
    return kernel_desc("ka_kernel", 256), f"; @launch kernel=ka_kernel grid=(256,1,1) block=(512,1,1) lds={2*DSZ}"
```

```python
from gen import *

WS_SIZE = 0x10000000


def frow(a, dst, i_reg, half, tmp):
    a(f"v_lshrrev_b32 v{tmp}, 2, v{i_reg}")
    a(f"v_lshlrev_b32 v{tmp}, 3, v{tmp}")
    a(f"v_and_b32 v{dst}, 3, v{i_reg}")
    a(f"v_add3_u32 v{dst}, v{dst}, v{tmp}, {4*half}")


def gen_k4(a):
    NST, RING, SLOT = 8, 5, 28672
    kernel_head(a, "k4_kernel")
    a("s_cmp_ge_u32 s2, 240")
    a("s_cbranch_scc1 K4_END")
    a(f"s_load_dwordx2 s[4:5], s[0:1], {KA_WS}")
    a(f"s_load_dwordx2 s[6:7], s[0:1], {KA_B1}")
    a("s_and_b32 s20, s2, 7")
    a("s_lshl_b32 s20, s20, 1")
    a("s_bfe_u32 s21, s2, 0x10003")
    a("s_add_u32 s20, s20, s21")
    a("s_lshr_b32 s21, s2, 4")
    a("s_lshl_b32 s20, s20, 7")
    a("s_mul_i32 s21, s21, 96")
    a("v_lshrrev_b32 v1, 6, v0")
    a("v_readfirstlane_b32 s22, v1")
    a("v_and_b32 v2, 63, v0")
    a("v_and_b32 v3, 15, v2")
    a("v_lshrrev_b32 v4, 4, v2")
    a("s_waitcnt lgkmcnt(0)")
    srd(a, 8, 4, 5, WS_SIZE)
    srd(a, 12, 6, 7, F * 2)
    a("v_lshlrev_b32 v28, 4, v2")
    a("s_mul_i32 s30, s21, 0x5555556")
    a("s_lshr_b32 s30, s2, 4")
    a("s_mul_i32 s30, s30, 6")
    a("s_lshl_b32 s30, s30, 14")
    a(f"s_add_u32 s30, s30, {WS_W1T}")
    a("s_lshl_b32 s31, s20, 10")
    a(f"s_add_u32 s31, s31, {WS_ZZ}")
    for j in range(7):
        a(f"s_mov_b32 s{32+j}, 0")
    for w in range(4):
        a(f"s_cmp_lg_u32 s22, {w}")
        a(f"s_cbranch_scc1 K4_PW{w}")
        for j in range(7):
            pi = w + 4 * j
            ks, item = divmod(pi, 14)
            if item < 6:
                a(f"s_add_u32 s{32+j}, s30, {item*16384 + ks*1024}")
            else:
                a(f"s_add_u32 s{32+j}, s31, {(item-6)*16384 + ks*1024}")
        a.label(f"K4_PW{w}")
    a("s_lshl_b32 s24, s22, 10")
    if os.environ.get("NOROT"):
        a("s_mov_b32 s29, 0")
    else:
        a("s_lshr_b32 s29, s2, 4")
        a("s_and_b32 s29, s29, 7")

    def issue(st):
        slot = st % RING
        a(f"s_add_u32 s25, s29, {st}")
        a("s_and_b32 s25, s25, 7")
        a("s_lshl_b32 s25, s25, 11")
        for j in range(7):
            a(f"s_add_u32 s39, s{32+j}, s25")
            a(f"s_add_u32 m0, s24, {slot*SLOT + 4096*j}")
            a(f"buffer_load_dwordx4 v28, s[8:11], s39 offen lds")

    def issue_list(st):
        slot = st % RING
        out = [f"s_add_u32 s25, s29, {st}", "s_and_b32 s25, s25, 7", "s_lshl_b32 s25, s25, 11"]
        for j in range(7):
            out += [f"s_add_u32 s39, s{32+j}, s25", f"s_add_u32 m0, s24, {slot*SLOT + 4096*j}",
                    "buffer_load_dwordx4 v28, s[8:11], s39 offen lds"]
        return out

    a("v_lshlrev_b32 v7, 3, v4")
    a("v_add_u32 v7, s21, v7")
    a("v_lshlrev_b32 v7, 1, v7")
    for P in range(3):
        a(f"buffer_load_dwordx4 v[{16+4*P}:{19+4*P}], v7, s[12:15], 0 offen offset:{64*P}")
    for st in range(3):
        issue(st)
    for i in range(48):
        a(f"v_mov_b32 v{32+i}, 0")
    a("s_lshl_b32 s26, s22, 11")

    def frag_reads(st, ks, buf):
        slot = st % RING
        b0 = 80 + 32 * buf
        out = []
        for ta in range(6):
            out.append(f"ds_read_b128 v[{b0+4*ta}:{b0+4*ta+3}], v{29 + (slot>=2) + (slot>=4)} offset:{(slot%2)*SLOT+(ks*14+ta)*1024}")
        for tb in range(2):
            out.append(f"ds_read_b128 v[{b0+24+4*tb}:{b0+27+4*tb}], v{144 + (slot>=2) + (slot>=4)} offset:{(slot%2)*SLOT+(ks*14+6+tb)*1024}")
        return out

    for k in range(3):
        a(f"v_add_u32 v{29+k}, {2*k*SLOT}, v28")
        a(f"v_add_u32 v{144+k}, s26, v{29+k}")
    a("s_waitcnt vmcnt(7)")
    a("s_barrier")
    stamp(a, 1)
    for r_ in frag_reads(0, 0, 0):
        a(r_)
    for st in range(NST):
        L = issue_list(st + 3) if st + 3 < NST else []
        li = 0
        for ks in range(2):
            buf = ks
            nxt = frag_reads(st, 1, 1) if ks == 0 else (frag_reads(st + 1, 0, 0) if st + 1 < NST else [])
            if ks == 1 and st + 1 < NST:
                pass
            a("s_waitcnt lgkmcnt(0)")
            ri = 0
            k = 0
            for tb in range(2):
                for ta in range(6):
                    acc = 32 + 4 * (tb * 6 + ta)
                    A = 80 + 32 * buf + 4 * ta
                    B = 80 + 32 * buf + 24 + 4 * tb
                    a(f"v_mfma_f32_16x16x32_bf16 v[{acc}:{acc+3}], v[{A}:{A+3}], v[{B}:{B+3}], v[{acc}:{acc+3}]")
                    k += 1
                    if ks == 0 or True:
                        for _ in range(1):
                            if li < len(L):
                                a(L[li]); li += 1
                    if ri < len(nxt) and k >= 2:
                        a(nxt[ri]); ri += 1
            while ri < len(nxt):
                a(nxt[ri]); ri += 1
        while li < len(L):
            a(L[li]); li += 1
        if st + 1 < NST:
            later = max(0, min(st + 3, NST - 1) - (st + 2))
            a(f"s_waitcnt vmcnt({7*later})")
            a("s_barrier")
            if st in (0, 3, 6):
                stamp(a, {0: 2, 3: 3, 6: 4}[st])
    a.nop(24)
    stamp(a, 5)
    a("s_mov_b32 s27, 0x40135761")
    a("s_mov_b32 s28, 0x3dd2d3e7")
    a("v_mov_b32 v116, s28")
    a("v_mov_b32 v117, s28")
    a("v_mov_b32 v118, s27")
    a("v_mov_b32 v119, s27")
    a("v_mov_b32 v120, 1.0")
    a("v_mov_b32 v121, 1.0")
    a("s_lshr_b32 s23, s20, 4")
    a("s_lshl_b32 s29, s22, 1")
    a("s_add_u32 s23, s23, s29")
    a("s_mul_i32 s23, s23, 43")
    a("s_lshr_b32 s29, s2, 4")
    a("s_mul_i32 s29, s29, 3")
    a("s_add_u32 s23, s23, s29")
    a("s_lshl_b32 s23, s23, 10")
    a(f"s_add_u32 s23, s23, {WS_HH}")
    a("v_add_u32 v7, s23, v28")
    a(f"v_add_u32 v8, {43*1024}, v7")
    for P in range(3):
        if P > 0:
            a(f"s_add_u32 s23, s21, {32*P}")
            a(f"s_cmp_ge_u32 s23, {F}")
            a("s_cbranch_scc1 K4_FIN")
        unpack_to = 80
        for k in range(4):
            a(f"v_lshlrev_b32 v{unpack_to+2*k}, 16, v{16+4*P+k}")
            a(f"v_and_b32 v{unpack_to+2*k+1}, 0xffff0000, v{16+4*P+k}")
        for tb in range(2):
            e0 = 32 + 4 * (tb * 6 + 2 * P)
            X = 88
            for k in range(4):
                a(f"v_cvt_pk_bf16_f32 v{96+k}, v{e0+2*k}, v{e0+2*k+1}")
            for k in range(4):
                a(f"v_lshlrev_b32 v{X+2*k}, 16, v{96+k}")
                a(f"v_and_b32 v{X+2*k+1}, 0xffff0000, v{96+k}")
            for k in range(4):
                a(f"v_pk_add_f32 v[{X+2*k}:{X+2*k+1}], v[{X+2*k}:{X+2*k+1}], v[{80+2*k}:{81+2*k}]")
            for k in range(4):
                a(f"v_cvt_pk_bf16_f32 v{96+k}, v{X+2*k}, v{X+2*k+1}")
            for k in range(4):
                a(f"v_lshlrev_b32 v{X+2*k}, 16, v{96+k}")
                a(f"v_and_b32 v{X+2*k+1}, 0xffff0000, v{96+k}")
            Y = 100
            for k in range(4):
                a(f"v_pk_mul_f32 v[{Y+2*k}:{Y+2*k+1}], v[{X+2*k}:{X+2*k+1}], v[{X+2*k}:{X+2*k+1}]")
            for k in range(4):
                a(f"v_pk_fma_f32 v[{Y+2*k}:{Y+2*k+1}], v[{Y+2*k}:{Y+2*k+1}], v[116:117], v[118:119]")
            for k in range(4):
                a(f"v_pk_mul_f32 v[{Y+2*k}:{Y+2*k+1}], v[{Y+2*k}:{Y+2*k+1}], v[{X+2*k}:{X+2*k+1}]")
            for i in range(8):
                a(f"v_exp_f32 v{Y+i}, -v{Y+i}")
            for k in range(4):
                a(f"v_pk_add_f32 v[{Y+2*k}:{Y+2*k+1}], v[{Y+2*k}:{Y+2*k+1}], v[120:121]")
            for i in range(8):
                a(f"v_rcp_f32 v{Y+i}, v{Y+i}")
            for k in range(4):
                a(f"v_pk_mul_f32 v[{Y+2*k}:{Y+2*k+1}], v[{Y+2*k}:{Y+2*k+1}], v[{X+2*k}:{X+2*k+1}]")
            O = 108 + 4 * tb
            for k in range(4):
                a(f"v_cvt_pk_bf16_f32 v{O+k}, v{Y+2*k}, v{Y+2*k+1}")
            a(f"buffer_store_dwordx4 v[{O}:{O+3}], v{7+tb}, s[8:11], 0 offen offset:{1024*P}")
    a.label("K4_FIN")
    stamp(a, 6)
    if STAMPS:
        a("s_waitcnt vmcnt(0)")
    stamp(a, 7)
    stamp_flush(a, 4, 8, 4, 5)
    a.label("K4_END")
    a("s_endpgm")
    return kernel_desc("k4_kernel", 148), f"; @launch kernel=k4_kernel grid=(240,1,1) block=(256,1,1) lds={RING*SLOT}"


def gen_k5(a):
    kernel_head(a, "k5_kernel")
    a("s_cmp_ge_u32 s2, 256")
    a("s_cbranch_scc1 K5_END")
    a(f"s_load_dwordx2 s[4:5], s[0:1], {KA_WS}")
    a(f"s_load_dwordx2 s[6:7], s[0:1], {KA_B2}")
    a(f"s_load_dwordx2 s[16:17], s[0:1], {KA_OUT}")
    a("s_and_b32 s20, s2, 7")
    a("s_lshl_b32 s20, s20, 2")
    a("s_bfe_u32 s21, s2, 0x20003")
    a("s_add_u32 s20, s20, s21")
    a("s_lshr_b32 s21, s2, 5")
    a("s_lshl_b32 s20, s20, 6")
    a("s_lshl_b32 s21, s21, 6")
    a("v_lshrrev_b32 v1, 6, v0")
    a("v_readfirstlane_b32 s22, v1")
    a("v_and_b32 v2, 63, v0")
    a("v_and_b32 v3, 15, v2")
    a("v_lshrrev_b32 v4, 4, v2")
    a("s_waitcnt lgkmcnt(0)")
    srd(a, 8, 4, 5, WS_SIZE)
    srd(a, 12, 6, 7, D * 2)
    srd(a, 28, 16, 17, L * D * 2)
    a("v_lshlrev_b32 v17, 4, v2")
    a("s_lshr_b32 s23, s21, 4")
    a(f"s_mul_i32 s23, s23, {43*1024}")
    a(f"s_add_u32 s32, s23, {WS_W2T}")
    a("s_lshr_b32 s23, s20, 4")
    a(f"s_mul_i32 s23, s23, {43*1024}")
    a(f"s_add_u32 s33, s23, {WS_HH}")
    a("s_cmp_eq_u32 s22, 3")
    a("s_cselect_b32 s34, 10, 11")
    if os.environ.get("NOROT"):
        a("s_mov_b32 s35, 0")
    else:
        a("s_lshr_b32 s35, s2, 5")
    NB = 4

    def issue(s):
        b = 96 + 32 * (s % NB)
        a("s_lshl_b32 s36, s35, 2")
        a("s_add_u32 s36, s36, s22")
        a("s_lshl_b32 s36, s36, 10")
        a("s_add_u32 s37, s36, s32")
        a("s_add_u32 s38, s36, s33")
        for j in range(4):
            a(f"buffer_load_dwordx4 v[{b+4*j}:{b+4*j+3}], v17, s[8:11], s37 offen")
            if j < 3:
                a(f"s_add_u32 s37, s37, {43*1024}")
        for j in range(4):
            a(f"buffer_load_dwordx4 v[{b+16+4*j}:{b+16+4*j+3}], v17, s[8:11], s38 offen")
            if j < 3:
                a(f"s_add_u32 s38, s38, {43*1024}")
        a("s_add_u32 s35, s35, 1")
        a("s_cmp_ge_u32 s35, s34")
        a("s_cselect_b32 s35, 0, s35")

    issue(0)
    issue(1)
    issue(2)
    for i in range(64):
        a(f"v_mov_b32 v{32+i}, 0")
    for s in range(11):
        if s == 10:
            a("s_cmp_eq_u32 s22, 3")
            a("s_cbranch_scc1 K5_RED")
        if s + 3 < 11:
            issue(s + 3)
            a("s_waitcnt vmcnt(24)")
        else:
            a(f"s_waitcnt vmcnt({8*(10-s)})")
        if s in (0, 1, 5):
            stamp(a, {0: 1, 1: 2, 5: 3}[s])
        b = 96 + 32 * (s % NB)
        for tb in range(4):
            for ta in range(4):
                acc = 32 + 4 * (tb * 4 + ta)
                a(f"v_mfma_f32_16x16x32_bf16 v[{acc}:{acc+3}], v[{b+4*ta}:{b+4*ta+3}], v[{b+16+4*tb}:{b+16+4*tb+3}], v[{acc}:{acc+3}]")
    a.label("K5_RED")
    stamp(a, 4)
    a.flush()
    a.nop(24)
    a("s_waitcnt vmcnt(0)")
    a("s_lshl_b32 s23, s22, 14")
    a("v_add_u32 v18, s23, v17")
    for t in range(16):
        a(f"ds_write_b128 v18, v[{32+4*t}:{35+4*t}] offset:{1024*t}")
    a("s_lshl_b32 s23, s22, 4")
    a("s_add_u32 s23, s23, s20")
    a("v_add_u32 v7, s23, v3")
    a("v_lshlrev_b32 v7, 10, v7")
    a("v_lshlrev_b32 v8, 3, v4")
    a("v_add_u32 v8, s21, v8")
    a("v_lshlrev_b32 v8, 1, v8")
    a("v_add_u32 v7, v7, v8")
    a(f"v_add_u32 v9, {WS_HR}, v7")
    for P in range(2):
        a(f"buffer_load_dwordx4 v[{160+4*P}:{163+4*P}], v9, s[8:11], 0 offen offset:{64*P}")
        a(f"buffer_load_dwordx4 v[{168+4*P}:{171+4*P}], v8, s[12:15], 0 offen offset:{64*P}")
    a("s_lshl_b32 s23, s22, 12")
    a("v_add_u32 v18, s23, v17")
    a("s_waitcnt lgkmcnt(0)")
    a("s_barrier")
    stamp(a, 5)
    for src in range(4):
        for ta in range(4):
            b = 32 + 16 * src + 4 * ta
            a(f"ds_read_b128 v[{b}:{b+3}], v18 offset:{16384*src+1024*ta}")
    a("s_waitcnt lgkmcnt(0)")
    for i in range(16):
        a(f"v_add_f32 v{32+i}, v{32+i}, v{48+i}")
        a(f"v_add_f32 v{64+i}, v{64+i}, v{80+i}")
    for i in range(16):
        a(f"v_add_f32 v{32+i}, v{32+i}, v{64+i}")
    a("s_waitcnt vmcnt(0)")
    for P in range(2):
        e0 = 32 + 8 * P
        X, Bq, Hq = 96, 104, 112
        for k in range(4):
            a(f"v_cvt_pk_bf16_f32 v{120+k}, v{e0+2*k}, v{e0+2*k+1}")
        for k in range(4):
            a(f"v_lshlrev_b32 v{X+2*k}, 16, v{120+k}")
            a(f"v_and_b32 v{X+2*k+1}, 0xffff0000, v{120+k}")
            a(f"v_lshlrev_b32 v{Bq+2*k}, 16, v{168+4*P+k}")
            a(f"v_and_b32 v{Bq+2*k+1}, 0xffff0000, v{168+4*P+k}")
            a(f"v_lshlrev_b32 v{Hq+2*k}, 16, v{160+4*P+k}")
            a(f"v_and_b32 v{Hq+2*k+1}, 0xffff0000, v{160+4*P+k}")
        for i in range(8):
            a(f"v_add_f32 v{X+i}, v{X+i}, v{Bq+i}")
        for k in range(4):
            a(f"v_cvt_pk_bf16_f32 v{120+k}, v{X+2*k}, v{X+2*k+1}")
        for k in range(4):
            a(f"v_lshlrev_b32 v{X+2*k}, 16, v{120+k}")
            a(f"v_and_b32 v{X+2*k+1}, 0xffff0000, v{120+k}")
        for i in range(8):
            a(f"v_add_f32 v{X+i}, v{X+i}, v{Hq+i}")
        O = 124 + 4 * P
        for k in range(4):
            a(f"v_cvt_pk_bf16_f32 v{O+k}, v{X+2*k}, v{X+2*k+1}")
        a(f"buffer_store_dwordx4 v[{O}:{O+3}], v7, s[28:31], 0 offen offset:{64*P}")
    stamp(a, 6)
    if STAMPS:
        a("s_waitcnt vmcnt(0)")
    stamp(a, 7)
    stamp_flush(a, 5, 8, 4, 5)
    a.label("K5_END")
    a("s_endpgm")
    return kernel_desc("k5_kernel", 224), "; @launch kernel=k5_kernel grid=(256,1,1) block=(256,1,1) lds=65536"
```

```python
import sys
from asmlib import Asm

KA_X, KA_LOGA, KA_AIM, KA_CRE, KA_CIM, KA_LOGDT, KA_DSK, KA_BX, KA_W1, KA_B1, KA_W2, KA_B2, KA_OUT, KA_DBG, KA_WS = [8 * i for i in range(15)]
WS_UT = 0x000000
WS_AT = 0x200000
WS_HR = 0x400000
WS_ZZ = 0x600000
WS_W1T = 0x800000
WS_W2T = 0xA00000
WS_HH = 0xC00000

L, D, N, F = 2048, 512, 128, 1376


def srd(a, d, lo, hi, nbytes, off=0):
    if off:
        a(f"s_add_u32 s{d}, s{lo}, {hex(off)}")
        a(f"s_addc_u32 s{d+1}, s{hi}, 0")
        a(f"s_and_b32 s{d+1}, s{d+1}, 0xffff")
    else:
        a(f"s_mov_b32 s{d}, s{lo}")
        a(f"s_and_b32 s{d+1}, s{hi}, 0xffff")
    a(f"s_mov_b32 s{d+2}, {hex(nbytes)}")
    a(f"s_mov_b32 s{d+3}, 0x20000")


def wave_sum(a, v, t, s):
    a(f"v_add_f32_dpp v{t}, v{v}, v{v} quad_perm:[1,0,3,2] row_mask:0xf bank_mask:0xf")
    a(f"v_add_f32_dpp v{t}, v{t}, v{t} quad_perm:[2,3,0,1] row_mask:0xf bank_mask:0xf")
    a(f"v_add_f32_dpp v{t}, v{t}, v{t} row_half_mirror row_mask:0xf bank_mask:0xf")
    a(f"v_add_f32_dpp v{t}, v{t}, v{t} row_mirror row_mask:0xf bank_mask:0xf")
    a(f"v_add_f32_dpp v{t}, v{t}, v{t} row_bcast:15 row_mask:0xa bank_mask:0xf")
    a(f"v_add_f32_dpp v{t}, v{t}, v{t} row_bcast:31 row_mask:0xc bank_mask:0xf")
    a(f"v_readlane_b32 s{s}, v{t}, 63")


def bf16r(a, d, s):
    a(f"v_cvt_pk_bf16_f32 v{d}, v{s}, v{s}")
    a(f"v_and_b32 v{d}, 0xffff0000, v{d}")


def layernorm(a, X, P, T, S):
    t0, t1, t2, t3, vm, vmb, vr = T, T + 1, T + 2, T + 3, T + 4, T + 5, T + 6
    dd = T + 7
    a(f"v_add_f32 v{t0}, v{X}, v{X+1}")
    a(f"v_add_f32 v{t1}, v{X+2}, v{X+3}")
    a(f"v_add_f32 v{t2}, v{X+4}, v{X+5}")
    a(f"v_add_f32 v{t3}, v{X+6}, v{X+7}")
    a(f"v_add_f32 v{t0}, v{t0}, v{t1}")
    a(f"v_add_f32 v{t2}, v{t2}, v{t3}")
    a(f"v_add_f32 v{t0}, v{t0}, v{t2}")
    wave_sum(a, t0, t1, S)
    a(f"v_mov_b32 v{vm}, s{S}")
    a(f"v_mul_f32 v{vm}, 0x3b000000, v{vm}")
    for i in range(8):
        a(f"v_sub_f32 v{dd+i}, v{X+i}, v{vm}")
    a(f"v_mul_f32 v{t0}, v{dd}, v{dd}")
    a(f"v_mul_f32 v{t1}, v{dd+1}, v{dd+1}")
    for i in range(2, 8, 2):
        a(f"v_fmac_f32 v{t0}, v{dd+i}, v{dd+i}")
        a(f"v_fmac_f32 v{t1}, v{dd+i+1}, v{dd+i+1}")
    a(f"v_add_f32 v{t0}, v{t0}, v{t1}")
    wave_sum(a, t0, t1, S + 1)
    bf16r(a, vmb, vm)
    a(f"v_mov_b32 v{t0}, s{S+1}")
    a(f"v_mul_f32 v{t0}, 0x3b000000, v{t0}")
    bf16r(a, t0, t0)
    a(f"v_add_f32 v{t0}, 0x3727c5ac, v{t0}")
    bf16r(a, t0, t0)
    a(f"v_sqrt_f32 v{t0}, v{t0}")
    bf16r(a, t0, t0)
    a(f"v_rcp_f32 v{vr}, v{t0}")
    for i in range(8):
        a(f"v_sub_f32 v{dd+i}, v{X+i}, v{vmb}")
    for k in range(4):
        a(f"v_cvt_pk_bf16_f32 v{t0+k}, v{dd+2*k}, v{dd+2*k+1}")
    for k in range(4):
        a(f"v_lshlrev_b32 v{dd+2*k}, 16, v{t0+k}")
        a(f"v_and_b32 v{dd+2*k+1}, 0xffff0000, v{t0+k}")
    for i in range(8):
        a(f"v_mul_f32 v{dd+i}, v{dd+i}, v{vr}")
    for k in range(4):
        a(f"v_cvt_pk_bf16_f32 v{P+k}, v{dd+2*k}, v{dd+2*k+1}")


class Rec:
    def __init__(self):
        self.ins = []
    def __call__(self, t):
        self.ins.append(t)


def interleave(a, *recs):
    n = max(len(r.ins) for r in recs)
    for i in range(n):
        for r in recs:
            if i < len(r.ins):
                a(r.ins[i])


def unpack8(a, X, P):
    for k in range(4):
        a(f"v_lshlrev_b32 v{X+2*k}, 16, v{P+k}")
        a(f"v_and_b32 v{X+2*k+1}, 0xffff0000, v{P+k}")


import os
STAMPS = os.environ.get('STAMPS') == '1'
STAMP_BASE = 0xF000000


def stamp(a, idx):
    if STAMPS:
        a(f"s_memtime s[{70+2*idx}:{71+2*idx}]")


def stamp_flush(a, kid, n, ws_lo, ws_hi):
    if not STAMPS:
        return
    a("s_memrealtime s[68:69]")
    a("s_waitcnt lgkmcnt(0)")
    a(f"s_add_u32 s96, s{ws_lo}, {hex(STAMP_BASE + kid*0x10000)}")
    a(f"s_addc_u32 s97, s{ws_hi}, 0")
    a("s_and_b32 s97, s97, 0xffff")
    a("s_mov_b32 s98, 0x10000")
    a("s_mov_b32 s99, 0x20000")
    a("s_lshl_b32 s95, s2, 7")
    a("v_cmp_eq_u32 vcc, 0, v235")
    a("s_and_saveexec_b64 s[92:93], vcc")
    a(f"s_cbranch_execz STAMP_SK{kid}")
    a("v_mov_b32 v1, s95")
    for i in range(n + 1):
        r = 68 + 2 * i
        a(f"v_mov_b32 v2, s{r}")
        a(f"v_mov_b32 v3, s{r+1}")
        a(f"buffer_store_dwordx2 v[2:3], v1, s[96:99], 0 offen offset:{8*i}")
    a.label(f"STAMP_SK{kid}")
    a("s_mov_b64 exec, s[92:93]")


def kernel_head(a, name):
    a.raw(f".globl {name}")
    a.raw(".p2align 8")
    a.raw(f".type {name},@function")
    a.label(name)
    if STAMPS:
        a("v_mov_b32 v235, v0")
        a("s_memtime s[70:71]")


def kernel_desc(name, vgpr, sgpr=102, accum=None):
    if STAMPS:
        vgpr, accum = 256, 256
    if accum is None:
        accum = (vgpr + 3) // 4 * 4
    return f""".amdhsa_kernel {name}
  .amdhsa_next_free_vgpr {vgpr}
  .amdhsa_next_free_sgpr {sgpr}
  .amdhsa_accum_offset {accum}
  .amdhsa_group_segment_fixed_size 0
  .amdhsa_kernarg_size 120
  .amdhsa_user_sgpr_count 2
  .amdhsa_user_sgpr_kernarg_segment_ptr 1
  .amdhsa_system_sgpr_workgroup_id_x 1
  .amdhsa_float_denorm_mode_32 3
.end_amdhsa_kernel
"""


K1_NWG = 256 + 176 + 172


def gen_k1(a):
    kernel_head(a, "k1_kernel")
    a(f"s_cmp_ge_u32 s2, {K1_NWG}")
    a("s_cbranch_scc1 K1_END")
    a(f"s_load_dwordx2 s[4:5], s[0:1], {KA_X}")
    a(f"s_load_dwordx2 s[6:7], s[0:1], {KA_WS}")
    a(f"s_load_dwordx2 s[20:21], s[0:1], {KA_W1}")
    a(f"s_load_dwordx2 s[22:23], s[0:1], {KA_W2}")
    a("s_waitcnt lgkmcnt(0)")
    a("s_cmp_ge_u32 s2, 256")
    a("s_cbranch_scc1 K1_TR")
    srd(a, 8, 4, 5, 0x200000)
    srd(a, 12, 6, 7, 0x200000, WS_UT)
    a("s_lshl_b32 s3, s2, 13")
    a("v_lshlrev_b32 v1, 4, v0")
    a("v_add_u32 v1, s3, v1")
    a("buffer_load_dwordx4 v[4:7], v1, s[8:11], 0 offen")
    a("v_lshrrev_b32 v2, 6, v0")
    a("v_and_b32 v3, 63, v0")
    a("v_lshlrev_b32 v3, 4, v3")
    a("v_lshl_add_u32 v3, v2, 1, v3")
    a("s_waitcnt vmcnt(0)")
    stamp(a, 1)
    unpack8(a, 8, 4)
    layernorm(a, 8, 16, 24, 16)
    stamp(a, 2)
    for e in range(8):
        op = "ds_write_b16" if e % 2 == 0 else "ds_write_b16_d16_hi"
        a(f"{op} v3, v{16+e//2} offset:{e*1040}")
    a("v_and_b32 v4, 7, v0")
    a("v_mul_u32_u24 v4, 65, v4")
    a("v_lshrrev_b32 v5, 3, v0")
    a("v_add_lshl_u32 v4, v4, v5, 4")
    a("s_waitcnt lgkmcnt(0)")
    a("s_barrier")
    a("ds_read_b128 v[8:11], v4")
    a("s_lshl_b32 s3, s2, 4")
    a("v_lshlrev_b32 v5, 12, v0")
    a("v_add_u32 v5, s3, v5")
    a("s_waitcnt lgkmcnt(0)")
    a("buffer_store_dwordx4 v[8:11], v5, s[12:15], 0 offen")
    stamp(a, 3)
    if STAMPS:
        a("s_waitcnt vmcnt(0)")
    stamp(a, 4)
    stamp_flush(a, 1, 5, 6, 7)
    a("s_branch K1_END")
    a.label("K1_TR")
    a("s_sub_u32 s3, s2, 256")
    a("s_cmp_ge_u32 s3, 176")
    a("s_cbranch_scc1 K1_TR2")
    a("s_and_b32 s24, s3, 15")
    a("s_lshr_b32 s25, s3, 4")
    srd(a, 8, 20, 21, D * F * 2)
    srd(a, 12, 6, 7, D * F * 2, WS_W1T)
    a(f"s_mov_b32 s26, {F*2}")
    a(f"s_mov_b32 s27, {F}")
    a("s_mov_b32 s28, 16")
    a("s_branch K1_TRC")
    a.label("K1_TR2")
    a("s_sub_u32 s3, s3, 176")
    a("s_lshr_b32 s24, s3, 2")
    a("s_and_b32 s25, s3, 3")
    srd(a, 8, 22, 23, D * F * 2)
    srd(a, 12, 6, 7, D * F * 2, WS_W2T)
    a(f"s_mov_b32 s26, {D*2}")
    a(f"s_mov_b32 s27, {D}")
    a("s_mov_b32 s28, 43")
    a.label("K1_TRC")
    a("s_lshl_b32 s24, s24, 5")
    a("s_lshl_b32 s25, s25, 7")
    a("v_lshrrev_b32 v1, 4, v0")
    a("v_and_b32 v2, 15, v0")
    a("v_lshlrev_b32 v3, 3, v2")
    a("v_add_u32 v3, s25, v3")
    a("v_add_u32 v4, s24, v1")
    a("v_mul_lo_u32 v4, v4, s26")
    a("v_lshl_add_u32 v4, v3, 1, v4")
    a("v_mul_u32_u24 v5, 544, v2")
    a("v_lshl_add_u32 v5, v1, 1, v5")
    a("v_cmp_gt_u32 vcc, s27, v3")
    a("s_and_saveexec_b64 s[30:31], vcc")
    a("s_cbranch_execz K1_TR_SK1")
    a("buffer_load_dwordx4 v[8:11], v4, s[8:11], 0 offen")
    a("s_waitcnt vmcnt(0)")
    for e in range(8):
        op = "ds_write_b16" if e % 2 == 0 else "ds_write_b16_d16_hi"
        a(f"{op} v5, v{8+e//2} offset:{e*68}")
    a.label("K1_TR_SK1")
    a("s_mov_b64 exec, s[30:31]")
    a("v_lshrrev_b32 v1, 2, v0")
    a("v_and_b32 v2, 3, v0")
    a("v_mul_u32_u24 v5, 68, v1")
    a("v_lshl_add_u32 v5, v2, 4, v5")
    a("v_add_u32 v3, s25, v1")
    a("v_lshrrev_b32 v4, 5, v3")
    a("v_bfe_u32 v6, v3, 2, 1")
    a("v_lshl_add_u32 v4, v4, 1, v6")
    a("v_mul_lo_u32 v4, v4, s28")
    a("s_lshr_b32 s29, s24, 5")
    a("v_add_u32 v4, s29, v4")
    a("v_lshlrev_b32 v4, 10, v4")
    a("v_bfe_u32 v6, v3, 3, 2")
    a("v_and_b32 v7, 3, v3")
    a("v_lshl_add_u32 v6, v6, 2, v7")
    a("v_lshl_add_u32 v6, v2, 4, v6")
    a("v_lshl_add_u32 v4, v6, 4, v4")
    a("s_waitcnt lgkmcnt(0)")
    a("s_barrier")
    a("v_cmp_gt_u32 vcc, s27, v3")
    a("s_and_saveexec_b64 s[30:31], vcc")
    a("s_cbranch_execz K1_TR_SK2")
    a("ds_read2_b32 v[8:9], v5 offset0:0 offset1:1")
    a("ds_read2_b32 v[10:11], v5 offset0:2 offset1:3")
    a("s_waitcnt lgkmcnt(0)")
    a("buffer_store_dwordx4 v[8:11], v4, s[12:15], 0 offen")
    a.label("K1_TR_SK2")
    a("s_mov_b64 exec, s[30:31]")
    a.label("K1_END")
    a("s_endpgm")
    return kernel_desc("k1_kernel", 48)


def gen_k3(a):
    kernel_head(a, "k3_kernel")
    a("s_cmp_ge_u32 s2, 256")
    a("s_cbranch_scc1 K3_END")
    a("s_lshr_b32 s30, s2, 3")
    a("s_and_b32 s3, s2, 7")
    a("s_lshl_b32 s3, s3, 5")
    a("s_lshr_b32 s2, s2, 3")
    a("s_add_u32 s2, s2, s3")
    a(f"s_load_dwordx2 s[4:5], s[0:1], {KA_X}")
    a(f"s_load_dwordx2 s[6:7], s[0:1], {KA_WS}")
    a("s_waitcnt lgkmcnt(0)")
    srd(a, 8, 4, 5, 0x200000)
    srd(a, 12, 6, 7, 0x200000, WS_AT)
    srd(a, 20, 6, 7, 0x200000, WS_HR)
    srd(a, 24, 6, 7, 0x200000, WS_ZZ)
    a("s_lshl_b32 s3, s2, 4")
    a("v_lshlrev_b32 v5, 12, v0")
    a("v_add_u32 v5, s3, v5")
    a("buffer_load_dwordx4 v[40:43], v5, s[12:15], 0 offen")
    a("s_lshl_b32 s3, s2, 13")
    a("v_lshlrev_b32 v1, 4, v0")
    a("v_add_u32 v1, s3, v1")
    a("buffer_load_dwordx4 v[4:7], v1, s[8:11], 0 offen")
    a("v_and_b32 v44, 7, v0")
    a("v_mul_u32_u24 v44, 65, v44")
    a("v_lshrrev_b32 v45, 3, v0")
    a("v_add_lshl_u32 v44, v44, v45, 4")
    a("v_lshrrev_b32 v2, 6, v0")
    a("v_and_b32 v3, 63, v0")
    a("v_lshlrev_b32 v3, 4, v3")
    a("v_lshl_add_u32 v3, v2, 1, v3")
    a("s_waitcnt vmcnt(1)")
    stamp(a, 1)
    a("ds_write_b128 v44, v[40:43]")
    a("s_waitcnt lgkmcnt(0)")
    a("s_barrier")
    for e in range(8):
        a(f"ds_read_u16 v{48+e}, v3 offset:{e*1040}")
    a("s_waitcnt vmcnt(0)")
    unpack8(a, 8, 4)
    a("s_waitcnt lgkmcnt(0)")
    for e in range(8):
        a(f"v_lshlrev_b32 v{48+e}, 16, v{48+e}")
        a(f"v_add_f32 v{8+e}, v{8+e}, v{48+e}")
    for k in range(4):
        a(f"v_cvt_pk_bf16_f32 v{40+k}, v{8+2*k}, v{9+2*k}")
    stamp(a, 2)
    a("buffer_store_dwordx4 v[40:43], v1, s[20:23], 0 offen")
    unpack8(a, 8, 40)
    layernorm(a, 8, 16, 24, 16)
    unpack8(a, 8, 16)
    layernorm(a, 8, 16, 24, 16)
    stamp(a, 3)
    a("s_lshr_b32 s3, s2, 1")
    a("s_lshl_b32 s3, s3, 14")
    a("s_and_b32 s28, s2, 1")
    a("s_lshl_b32 s28, s28, 7")
    a("s_add_u32 s3, s3, s28")
    a("v_and_b32 v44, 63, v0")
    a("v_lshrrev_b32 v45, 2, v44")
    a("v_lshlrev_b32 v45, 10, v45")
    a("v_and_b32 v44, 3, v44")
    a("v_lshl_add_u32 v45, v44, 8, v45")
    a("v_lshl_add_u32 v45, v2, 4, v45")
    a("v_add_u32 v45, s3, v45")
    a("buffer_store_dwordx4 v[16:19], v45, s[24:27], 0 offen")
    if STAMPS:
        a("s_waitcnt vmcnt(0)")
    stamp(a, 4)
    stamp_flush(a, 3, 5, 6, 7)
    a.label("K3_END")
    a("s_endpgm")
    return kernel_desc("k3_kernel", 64)


def main():
    a = Asm()
    launches = []
    descs = []
    body = Asm()
    which = sys.argv[1] if len(sys.argv) > 1 else "all"
    import gen_a, gen_mm
    d, l = gen_a.gen_a(body); descs.append(d); launches.append(l)
    descs.append(gen_k3(body)); launches.append("; @launch kernel=k3_kernel grid=(256,1,1) block=(512,1,1) lds=8320")
    d, l = gen_mm.gen_k4(body); descs.append(d); launches.append(l)
    d, l = gen_mm.gen_k5(body); descs.append(d); launches.append(l)
    hdr = "; S4D conv + channel MLP, generated by dev/gen.py\n" + "\n".join(launches) + "\n"
    out = hdr + '.amdgcn_target "amdgcn-amd-amdhsa--gfx950"\n.text\n' + body.text()
    out += '.section .rodata,"a"\n' + "".join(".p2align 6\n" + d for d in descs)
    open(sys.argv[2] if len(sys.argv) > 2 else "sequential_preLN__ssm_conv_s4d__mixer_channel_mlp__prompt.s", "w").write(out)


if __name__ == "__main__":
    main()
```

```python
from gen import *

U0, U1, KH, KL, PR, KC, SC, DSZ = 0, 4160, 8320, 12928, 17536, 19584, 22656, 55424
L2E = "0x3fb8aa3b"
L2E_LO = "0x32a57060"
LN2 = "0x3f317218"


def exp_acc(a, d, x, t1, t2):
    a(f"v_mul_f32 v{t1}, {L2E}, v{x}")
    a(f"v_mov_b32 v{t2}, {L2E}")
    a(f"v_fma_f32 v{t2}, v{x}, v{t2}, -v{t1}")
    a(f"v_fmac_f32 v{t2}, {L2E_LO}, v{x}")
    a(f"v_exp_f32 v{d}, v{t1}")
    a(f"v_mul_f32 v{t2}, {LN2}, v{t2}")
    a(f"v_fmac_f32 v{d}, v{d}, v{t2}")


def gen_a(a):
    kernel_head(a, "ka_kernel")
    a("s_cmp_ge_u32 s2, 256")
    a("s_cbranch_scc1 KA_END")
    a(f"s_load_dwordx4 s[4:7], s[0:1], {KA_LOGA}")
    a(f"s_load_dwordx4 s[8:11], s[0:1], {KA_CRE}")
    a(f"s_load_dwordx4 s[12:15], s[0:1], {KA_LOGDT}")
    a(f"s_load_dwordx4 s[60:63], s[0:1], {KA_DBG}")
    a(f"s_load_dwordx2 s[64:65], s[0:1], {KA_X}")
    a(f"s_load_dwordx2 s[92:93], s[0:1], {KA_W1}")
    a(f"s_load_dwordx2 s[94:95], s[0:1], {KA_W2}")
    vT, vLane, vBb, vAb, vDsk, vBase, vC, vG = 224, 225, 226, 227, 231, 232, 233, 234
    a(f"v_and_b32 v{vT}, 255, v0")
    a(f"v_and_b32 v{vLane}, 63, v0")
    a("v_lshrrev_b32 v1, 6, v0")
    a("v_readfirstlane_b32 s18, v1")
    a("s_lshr_b32 s19, s18, 2")
    a("s_and_b32 s96, s18, 3")
    a("s_lshl_b32 s20, s2, 1")
    a("s_add_u32 s20, s20, s19")
    a(f"s_mul_i32 s21, s19, {DSZ}")
    a(f"v_mov_b32 v{vBase}, s21")
    a("s_waitcnt lgkmcnt(0)")
    a("s_mov_b32 s16, s62")
    a("s_mov_b32 s17, s63")
    srd(a, 84, 64, 65, 0x200000)
    srd(a, 88, 60, 61, 0x100)
    a("s_lshl_b32 s22, s2, 13")
    a("v_lshlrev_b32 v1, 4, v0")
    a("v_add_u32 v1, s22, v1")
    a("buffer_load_dwordx4 v[112:115], v1, s[84:87], 0 offen")
    srd(a, 24, 4, 5, 0x20000)
    srd(a, 28, 6, 7, 0x20000)
    srd(a, 32, 8, 9, 0x20000)
    srd(a, 36, 10, 11, 0x20000)
    srd(a, 40, 12, 13, 0x400)
    srd(a, 44, 14, 15, 0x400)
    srd(a, 48, 16, 17, 0x200000, WS_UT)
    srd(a, 52, 16, 17, 0x200000, WS_AT)
    srd(a, 56, 16, 17, 0x400000, WS_W1T)
    a("s_lshl_b32 s22, s20, 8")
    a(f"v_and_b32 v1, 127, v{vT}")
    a("v_lshl_add_u32 v1, v1, 1, s22")
    a("buffer_load_ushort v4, v1, s[24:27], 0 offen")
    a("buffer_load_ushort v5, v1, s[28:31], 0 offen")
    a("buffer_load_ushort v6, v1, s[32:35], 0 offen")
    a("buffer_load_ushort v7, v1, s[36:39], 0 offen")
    a("s_lshl_b32 s22, s20, 1")
    a("v_mov_b32 v2, s22")
    a("buffer_load_ushort v8, v2, s[40:43], 0 offen")
    a(f"buffer_load_ushort v{vDsk}, v2, s[44:47], 0 offen")

    def pack_setup(rnd, sr, sk):
        a(f"s_add_u32 s22, s20, {512*rnd}")
        a("s_cmp_lt_u32 s22, 352")
        a(f"s_cselect_b32 s{sr}, s92, s94")
        a(f"s_cselect_b32 s{sr+1}, s93, s95")
        a(f"s_mov_b32 s{sk+2}, {D}")
        a(f"s_cselect_b32 s{sk+2}, {F}, s{sk+2}")
        a(f"s_lshl_b32 s{sk+3}, s{sk+2}, 1")
        a("s_cmp_lt_u32 s22, 352")
        a(f"s_cselect_b32 s{sk+4}, 16, 43")
        a(f"s_cselect_b32 s{sk+5}, 0, {WS_W2T-WS_W1T}")
        a(f"s_and_b32 s{sr+1}, s{sr+1}, 0xffff")
        a(f"s_mov_b32 s{sr+2}, {D*F*2}")
        a(f"s_mov_b32 s{sr+3}, 0x20000")
        a("s_and_b32 s23, s22, 15")
        a("s_lshr_b32 s97, s22, 4")
        a("s_sub_u32 s98, s22, 352")
        a("s_lshr_b32 s99, s98, 3")
        a("s_and_b32 s98, s98, 7")
        a(f"s_cselect_b32 s{sk}, s23, s99")
        a("s_cmp_lt_u32 s22, 352")
        a(f"s_cselect_b32 s{sk}, s23, s99")
        a(f"s_cselect_b32 s{sk+1}, s97, s98")
        a(f"s_lshl_b32 s{sk}, s{sk}, 5")
        a(f"s_lshl_b32 s{sk+1}, s{sk+1}, 6")

    pack_setup(0, 4, 24)
    pack_setup(1, 8, 30)
    a(f"v_lshrrev_b32 v9, 3, v{vT}")
    a(f"v_and_b32 v10, 7, v{vT}")
    for rnd, sr, sk, dreg in ((0, 4, 24, 236), (1, 8, 30, 240)):
        a("v_lshlrev_b32 v11, 3, v10")
        a(f"v_add_u32 v11, s{sk+1}, v11")
        a(f"v_add_u32 v12, s{sk}, v9")
        a(f"v_mul_lo_u32 v12, v12, s{sk+3}")
        a("v_lshl_add_u32 v12, v11, 1, v12")
        a(f"v_cmp_gt_u32 vcc, s{sk+2}, v11")
        a("v_mov_b32 v13, 0x7ffffff0")
        a("v_cndmask_b32 v12, v13, v12, vcc")
        if rnd == 1:
            a("s_cmp_ge_u32 s20, 184")
            a(f"s_cselect_b32 s{sr+2}, 0, s{sr+2}")
        a(f"buffer_load_dwordx4 v[{dreg}:{dreg+3}], v12, s[{sr}:{sr+3}], 0 offen")

    a(f"v_lshlrev_b32 v9, 3, v{vT}")
    a("v_sub_u32 v9, 2047, v9")
    a(f"v_add_u32 v15, {KC}, v{vBase}")
    for k in range(8):
        a(f"v_subrev_u32 v10, {k}, v9")
        a("v_cvt_f32_u32 v10, v10")
        a("v_cvt_pk_bf16_f32 v10, v10, v10")
        a("v_and_b32 v10, 0xffff0000, v10")
        a("v_cvt_u32_f32 v11, v10")
        a("v_bfe_u32 v10, v10, 23, 8")
        a("v_subrev_u32 v10, 134, v10")
        a("v_med3_i32 v10, v10, 0, 3")
        a("v_lshrrev_b32 v12, 7, v11")
        a("v_and_b32 v13, 7, v11")
        a("v_bfe_u32 v11, v11, 3, 4")
        a("v_sub_u32 v14, 3, v10")
        a("v_lshlrev_b32 v12, v14, v12")
        a("v_lshrrev_b32 v13, v10, v13")
        a("v_lshl_add_u32 v12, v10, 3, v12")
        a("v_add_u32 v12, v12, v13")
        a("v_lshl_add_u32 v12, v12, 4, v11")
        a(f"v_lshl_add_u32 v{16+k}, v12, 2, v15")
    a(f"v_and_b32 v{vC}, 15, v{vLane}")
    a(f"v_lshrrev_b32 v{vG}, 4, v{vLane}")
    a(f"v_cmp_le_u32 vcc, 8, v{vC}")
    a(f"v_add_u32 v9, 120, v{vC}")
    a(f"v_cndmask_b32 v44, v{vC}, v9, vcc")
    a("v_cvt_f32_u32 v44, v44")
    a(f"v_lshrrev_b32 v9, 2, v{vC}")
    a("v_lshlrev_b32 v9, 7, v9")
    a(f"v_and_b32 v10, 3, v{vC}")
    a("v_lshl_add_u32 v9, v10, 1, v9")
    a("v_add_u32 v9, 256, v9")
    a(f"v_subrev_u32 v10, 8, v{vC}")
    a("v_lshrrev_b32 v10, 1, v10")
    a("v_lshlrev_b32 v10, 7, v10")
    a(f"v_and_b32 v11, 1, v{vC}")
    a("v_lshl_add_u32 v10, v11, 2, v10")
    a("v_add_u32 v10, 512, v10")
    a("v_cndmask_b32 v45, v9, v10, vcc")
    a("v_cvt_f32_u32 v45, v45")
    a(f"v_lshlrev_b32 v9, 7, v{vC}")
    a("v_add_u32 v9, 1024, v9")
    a("v_min_u32 v9, 2048, v9")
    a("v_cvt_f32_u32 v46, v9")
    a(f"v_lshlrev_b32 v9, 3, v{vC}")
    a("v_cvt_f32_u32 v47, v9")
    a("s_lshl_b32 s22, s96, 9")
    a(f"s_add_u32 s22, s22, {PR}")
    a(f"v_lshl_add_u32 v48, v{vG}, 6, v{vBase}")
    a("v_add_u32 v48, s22, v48")

    a("s_waitcnt vmcnt(8)")
    stamp(a, 1)
    a(f"v_lshlrev_b32 v2, 4, v{vLane}")
    a("s_lshl_b32 s22, s18, 1")
    a("v_add_u32 v2, s22, v2")
    unpack8(a, 120, 112)
    layernorm(a, 120, 128, 136, 66)
    for e in range(8):
        op = "ds_write_b16" if e % 2 == 0 else "ds_write_b16_d16_hi"
        a(f"{op} v2, v{128+e//2} offset:{e*1040}")
    a("v_and_b32 v3, 7, v0")
    a("v_mul_u32_u24 v3, 65, v3")
    a("v_lshrrev_b32 v1, 3, v0")
    a("v_add_lshl_u32 v3, v3, v1, 4")
    a("s_lshl_b32 s22, s2, 13")
    a("v_lshlrev_b32 v1, 4, v0")
    a("v_add_u32 v1, s22, v1")
    a("s_waitcnt lgkmcnt(0)")
    a("s_barrier")
    a("ds_read_b128 v[120:123], v3")

    a("s_waitcnt lgkmcnt(0)")
    a("buffer_store_dwordx4 v[120:123], v1, s[48:51], 0 offen sc1")
    a("s_waitcnt vmcnt(3)")
    for r in (4, 5, 6, 7, 8, vDsk):
        a(f"v_lshlrev_b32 v{r}, 16, v{r}")
    exp_acc(a, 9, 8, 10, 15)
    bf16r(a, 9, 9)
    exp_acc(a, 128, 4, 10, 15)
    bf16r(a, 128, 128)
    a("v_mul_f32 v128, v128, v9")
    a("v_mul_f32 v128, 0xbfb8aa3b, v128")
    a("v_mul_f32 v129, v5, v9")
    a("v_mul_f32 v129, 0.15915494, v129")
    a("v_mul_f32 v130, v6, v9")
    a("v_add_f32 v130, v130, v130")
    a("v_mul_f32 v131, v7, v9")
    a("v_add_f32 v131, v131, v131")
    a(f"v_and_b32 v9, 127, v{vT}")
    a(f"v_lshl_add_u32 v9, v9, 4, v{vBase}")
    a(f"ds_write_b128 v9, v[128:131] offset:{PR}")
    for i in range(12):
        a(f"v_mov_b32 v{96+i}, 0")
    a("s_waitcnt lgkmcnt(0)")
    a("s_barrier")
    stamp(a, 2)

    def kgen(ms):
        out = []
        for nn in range(4):
            pb = 128 + 4 * nn
            ent = [(47, None, 60, 64), (44, 1, 68, 72), (45, 1, 76, 80), (46, 1, 84, 88)]
            for n_, (y, isA, oh, ol) in enumerate(ent):
                e = 144 + 8 * n_
                c, o, h = e + 2, e + 4, e + 6
                yp = (y // 2) * 2
                sel = "op_sel_hi:[1,0]" if y % 2 == 0 else "op_sel:[0,1] op_sel_hi:[1,1]"
                out.append(f"v_pk_mul_f32 v[{e}:{e+1}], v[{pb}:{pb+1}], v[{yp}:{yp+1}] {sel}")
                out.append(f"v_exp_f32 v{e}, v{e}")
                out.append(f"v_fract_f32 v{e+1}, v{e+1}")
                out.append(f"v_cos_f32 v{c}, v{e+1}")
                out.append(f"v_sin_f32 v{c+1}, v{e+1}")
                if not isA:
                    out.append(f"v_pk_mul_f32 v[{o}:{o+1}], v[{c}:{c+1}], v[{e}:{e+1}] op_sel_hi:[1,0]")
                else:
                    out.append(f"v_pk_mul_f32 v[{c}:{c+1}], v[{c}:{c+1}], v[{e}:{e+1}] op_sel_hi:[1,0]")
                    out.append(f"v_pk_mul_f32 v[{o}:{o+1}], v[{pb+2}:{pb+3}], v[{c}:{c+1}] op_sel_hi:[1,0]")
                    out.append(f"v_pk_fma_f32 v[{o}:{o+1}], v[{pb+2}:{pb+3}], v[{c}:{c+1}], v[{o}:{o+1}] op_sel:[1,1,0] op_sel_hi:[0,1,1] neg_lo:[1,0,0] neg_hi:[1,0,1]")
                out.append(f"v_cvt_pk_bf16_f32 v{oh+nn}, v{o}, v{o+1}")
                out.append(f"v_lshlrev_b32 v{h}, 16, v{oh+nn}")
                out.append(f"v_and_b32 v{h+1}, 0xffff0000, v{oh+nn}")
                out.append(f"v_pk_add_f32 v[{o}:{o+1}], v[{o}:{o+1}], v[{h}:{h+1}] neg_lo:[0,1] neg_hi:[0,1]")
                out.append(f"v_cvt_pk_bf16_f32 v{ol+nn}, v{o}, v{o+1}")
        return out

    for ms in range(2):
        for nn in range(4):
            a(f"ds_read_b128 v[{128+4*nn}:{131+4*nn}], v48 offset:{256*ms+16*nn}")
        a("s_waitcnt lgkmcnt(0)")
        KG = kgen(ms)
        for ii, ins in enumerate(KG):
            a(ins)
            if ms == 0 and ii == len(KG) // 2:
                a("s_waitcnt vmcnt(0)")
                a("s_barrier")
                a("s_and_b32 s22, s2, 63")
                a("s_lshl_b32 s22, s22, 2")
                a("v_mov_b32 v1, s22")
                a("v_mov_b32 v2, 1")
                a("v_cmp_eq_u32 vcc, 0, v0")
                a("s_and_saveexec_b64 s[36:37], vcc")
                a("s_cbranch_execz KA_ARR")
                a("buffer_atomic_add v2, v1, s[88:91], 0 offen")
                a.label("KA_ARR")
                a("s_mov_b64 exec, s[36:37]")

        for gmm in range(3):
            ac = 96 + 4 * gmm
            Ah, Al = 68 + 8 * gmm, 72 + 8 * gmm
            a(f"v_mfma_f32_16x16x32_bf16 v[{ac}:{ac+3}], v[{Ah}:{Ah+3}], v[60:63], v[{ac}:{ac+3}]")
            a(f"v_mfma_f32_16x16x32_bf16 v[{ac}:{ac+3}], v[{Ah}:{Ah+3}], v[64:67], v[{ac}:{ac+3}]")
            a(f"v_mfma_f32_16x16x32_bf16 v[{ac}:{ac+3}], v[{Al}:{Al+3}], v[60:63], v[{ac}:{ac+3}]")
    stamp(a, 3)
    a("s_mul_i32 s22, s96, 3072")
    a(f"s_add_u32 s22, s22, {SC}")
    a(f"v_lshl_add_u32 v9, v{vG}, 8, v{vBase}")
    a(f"v_lshl_add_u32 v9, v{vC}, 2, v9")
    a("v_add_u32 v9, s22, v9")
    for gmm in range(3):
        for r in range(4):
            a(f"ds_write_b32 v9, v{96+4*gmm+r} offset:{gmm*1024+r*64}")
    def pack_store(sk, lbl):
        a(f"v_add_u32 v9, s{sk+1}, v12")
        a("v_lshrrev_b32 v10, 5, v9")
        a("v_bfe_u32 v15, v9, 2, 1")
        a("v_lshl_add_u32 v10, v10, 1, v15")
        a(f"v_mul_lo_u32 v10, v10, s{sk+4}")
        a(f"s_lshr_b32 s22, s{sk}, 5")
        a("v_add_u32 v10, s22, v10")
        a("v_lshlrev_b32 v10, 10, v10")
        a("v_bfe_u32 v15, v9, 3, 2")
        a("v_and_b32 v124, 3, v9")
        a("v_lshl_add_u32 v15, v15, 2, v124")
        a("v_lshl_add_u32 v15, v13, 4, v15")
        a("v_lshl_add_u32 v10, v15, 4, v10")
        a(f"v_add_u32 v10, s{sk+5}, v10")
        a(f"v_cmp_gt_u32 vcc, s{sk+2}, v9")
        a("s_and_saveexec_b64 s[36:37], vcc")
        a(f"s_cbranch_execz {lbl}")
        a("ds_read2_b32 v[124:125], v14 offset0:0 offset1:1")
        a("ds_read2_b32 v[126:127], v14 offset0:2 offset1:3")
        a("s_waitcnt lgkmcnt(0)")
        a("buffer_store_dwordx4 v[124:127], v10, s[56:59], 0 offen")
        a.label(lbl)
        a("s_mov_b64 exec, s[36:37]")

    a(f"v_lshrrev_b32 v9, 3, v{vT}")
    a(f"v_and_b32 v10, 7, v{vT}")
    a("v_mul_u32_u24 v11, 544, v10")
    a("v_lshl_add_u32 v11, v9, 1, v11")
    a(f"v_add_u32 v11, {SC+12288}, v11")
    a(f"v_add_u32 v11, v11, v{vBase}")
    a(f"v_lshrrev_b32 v12, 2, v{vT}")
    a(f"v_and_b32 v13, 3, v{vT}")
    a("v_mul_u32_u24 v14, 68, v12")
    a("v_lshl_add_u32 v14, v13, 4, v14")
    a(f"v_add_u32 v14, {SC+12288}, v14")
    a(f"v_add_u32 v14, v14, v{vBase}")
    for e in range(8):
        op = "ds_write_b16" if e % 2 == 0 else "ds_write_b16_d16_hi"
        a(f"{op} v11, v{236+e//2} offset:{e*68}")
        a(f"{op} v11, v{240+e//2} offset:{4352+e*68}")
    a("s_waitcnt lgkmcnt(0)")
    a("s_barrier")
    pack_store(24, "KA_PS0")
    a("s_cmp_ge_u32 s20, 184")
    a("s_cbranch_scc1 KA_PS1")
    a("v_add_u32 v14, 4352, v14")
    pack_store(30, "KA_PS1x")
    a.label("KA_PS1")
    a(f"v_lshlrev_b32 v1, 2, v{vLane}")
    a("s_cmp_lg_u32 s18, 0")
    a("s_cbranch_scc1 KA_GO")
    a.label("KA_POLL")
    a("buffer_load_dword v2, v1, s[88:91], 0 offen sc1")
    a("s_waitcnt vmcnt(0)")
    a("v_cmp_ne_u32 vcc, 4, v2")
    a("s_cmp_eq_u64 vcc, 0")
    a("s_cbranch_scc1 KA_GO")
    a("s_sleep 4")
    a("s_branch KA_POLL")
    a.label("KA_GO")
    a("s_barrier")
    a("s_lshl_b32 s22, s20, 4")
    a(f"v_lshl_add_u32 v3, v{vT}, 13, s22")
    a("v_add_u32 v4, 0x2000, v3")
    a("buffer_load_dwordx4 v[32:35], v3, s[48:51], 0 offen sc1")
    a("buffer_load_dword v36, v4, s[48:51], 0 offen sc1")
    a(f"v_lshl_add_u32 v10, v{vT}, 4, v{vBase}")
    for i in range(4):
        a(f"v_mov_b32 v{60+i}, 0")
    a(f"v_cmp_gt_u32 vcc, 30, v{vT}")
    a("s_and_saveexec_b64 s[36:37], vcc")
    a("s_cbranch_execz KA_Z2")
    a(f"ds_write_b128 v10, v[60:63] offset:{KH+4096}")
    a(f"ds_write_b128 v10, v[60:63] offset:{KL+4096}")
    a.label("KA_Z2")
    a("s_mov_b64 exec, s[36:37]")
    a(f"v_lshl_add_u32 v11, v{vT}, 2, v{vBase}")
    a("s_waitcnt lgkmcnt(0)")
    a("s_barrier")
    a(f"v_add_u32 v15, {SC}, v11")
    for j in range(3):
        a(f"ds_read2st64_b32 v[{64+4*j}:{65+4*j}], v15 offset0:{4*j} offset1:{4*j+12}")
        a(f"ds_read2st64_b32 v[{66+4*j}:{67+4*j}], v15 offset0:{4*j+24} offset1:{4*j+36}")
    a("s_waitcnt lgkmcnt(0)")
    for j in range(3):
        a(f"v_add_f32 v{64+4*j}, v{64+4*j}, v{65+4*j}")
        a(f"v_add_f32 v{66+4*j}, v{66+4*j}, v{67+4*j}")
        a(f"v_add_f32 v{64+4*j}, v{64+4*j}, v{66+4*j}")
        a(f"ds_write_b32 v11, v{64+4*j} offset:{KC+1024*j}")
    a(f"v_lshrrev_b32 v9, 1, v{vG}")
    a(f"v_and_b32 v15, 1, v{vG}")
    a(f"v_sub_u32 v12, v9, v{vC}")
    a("v_lshlrev_b32 v12, 5, v12")
    a("v_lshlrev_b32 v13, 4, v15")
    a("v_sub_u32 v12, v12, v13")
    a("s_lshl_b32 s22, s96, 7")
    a(f"s_add_u32 s23, s22, {KH+496}")
    a(f"v_add3_u32 v{vBb}, v12, v{vBase}, s23")
    a(f"v_add_u32 v12, 1, v{vC}")
    a("v_and_b32 v12, 1, v12")
    a("v_lshlrev_b32 v13, 4, v9")
    a(f"v_add_u32 v13, v13, v{vC}")
    a("v_lshlrev_b32 v14, 3, v15")
    a("v_sub_u32 v13, v13, v14")
    a("v_sub_u32 v13, v13, v12")
    a("v_add_u32 v13, 9, v13")
    a("v_lshlrev_b32 v13, 1, v13")
    a("v_mul_u32_u24 v14, 4160, v12")
    a("v_add_u32 v13, v13, v14")
    a(f"v_add3_u32 v{vAb}, v13, v{vBase}, s22")
    for i in range(1, 4):
        a(f"v_add_u32 v{vAb+i}, {1024*i}, v{vAb}")
    a("s_waitcnt lgkmcnt(0)")
    a("s_barrier")
    for k in range(8):
        a(f"ds_read_b32 v{64+k}, v{16+k}")
    a("s_waitcnt lgkmcnt(0)")
    for k in range(4):
        x0, x1 = 64 + 2 * k, 65 + 2 * k
        a(f"v_cvt_pk_bf16_f32 v{96+k}, v{x0}, v{x1}")
        a(f"v_lshlrev_b32 v72, 16, v{96+k}")
        a(f"v_and_b32 v73, 0xffff0000, v{96+k}")
        a(f"v_sub_f32 v{x0}, v{x0}, v72")
        a(f"v_sub_f32 v{x1}, v{x1}, v73")
        a(f"v_cvt_pk_bf16_f32 v{100+k}, v{x0}, v{x1}")
    a(f"ds_write_b128 v10, v[96:99] offset:{KH}")
    a(f"ds_write_b128 v10, v[100:103] offset:{KL}")
    a("s_waitcnt vmcnt(0)")
    a(f"ds_write_b128 v10, v[32:35] offset:{U0+32}")
    for k in range(4):
        a(f"v_alignbit_b32 v{44+k}, v{33+k}, v{32+k}, 16")
    a(f"ds_write_b128 v10, v[44:47] offset:{U1+32}")
    for k in range(3):
        a(f"v_mov_b32 v{52+k}, 0")
    a("v_lshlrev_b32 v55, 16, v32")
    a(f"v_cmp_eq_u32 vcc, 0, v{vT}")
    a("s_and_saveexec_b64 s[36:37], vcc")
    a("s_cbranch_execz KA_Z1")
    a(f"ds_write_b128 v{vBase}, v[60:63] offset:{U0}")
    a(f"ds_write_b128 v{vBase}, v[60:63] offset:{U0+16}")
    a(f"ds_write_b128 v{vBase}, v[60:63] offset:{U1}")
    a(f"ds_write_b128 v{vBase}, v[52:55] offset:{U1+16}")
    a.label("KA_Z1")
    a("s_mov_b64 exec, s[36:37]")
    a("s_waitcnt lgkmcnt(0)")
    a("s_barrier")
    stamp(a, 4)

    def reads(ri):
        sb = 32 + 96 * ri
        aq = []
        for q in range(8):
            ab = sb + 64 + 4 * q
            o = 16 * ri + 128 * (q & 1)
            aq.append([f"ds_read2_b32 v[{ab}:{ab+1}], v{vAb+(q>>1)} offset0:{o} offset1:{o+1}",
                       f"ds_read2_b32 v[{ab+2}:{ab+3}], v{vAb+(q>>1)} offset0:{o+2} offset1:{o+3}"])
        seq = list(aq[0])
        for p in range(7, -1, -1):
            seq.append(f"ds_read_b128 v[{sb+4*p}:{sb+4*p+3}], v{vBb} offset:{512*(7-p)+64*ri}")
            seq.append(f"ds_read_b128 v[{sb+32+4*p}:{sb+32+4*p+3}], v{vBb} offset:{4608+512*(7-p)+64*ri}")
        for q in range(1, 8):
            seq += aq[q]
        return seq

    def mfmas(ri):
        sb = 32 + 96 * ri
        out = []
        for q in range(8):
            ab = sb + 64 + 4 * q
            for t in range(7, q - 1, -1):
                p = t - q
                out.append(f"v_mfma_f32_16x16x32_bf16 v[{4*t}:{4*t+3}], v[{ab}:{ab+3}], v[{sb+4*p}:{sb+4*p+3}], v[{4*t}:{4*t+3}]")
                out.append(f"v_mfma_f32_16x16x32_bf16 v[{4*t}:{4*t+3}], v[{ab}:{ab+3}], v[{sb+32+4*p}:{sb+32+4*p+3}], v[{4*t}:{4*t+3}]")
        return out

    for r_ in reads(0):
        a(r_)
    for i in range(32):
        a(f"v_mov_b32 v{i}, 0")
    for ri in range(2):
        a("s_waitcnt lgkmcnt(0)")
        R = reads(1) if ri == 0 else []
        k = 0
        for i, m in enumerate(mfmas(ri)):
            a(m)
            if i % 2 == 1 and k < len(R):
                a(R[k]); k += 1
        assert k == len(R)
    stamp(a, 5)
    a("s_lshl_b32 s22, s96, 13")
    a(f"s_add_u32 s22, s22, {SC}")
    a(f"v_lshl_add_u32 v40, v{vLane}, 4, v{vBase}")
    a("v_add_u32 v41, s22, v40")
    for t in range(8):
        a(f"ds_write_b128 v41, v[{4*t}:{4*t+3}] offset:{1024*t}")
    a("s_lshl_b32 s22, s96, 11")
    a(f"s_add_u32 s23, s22, {SC}")
    a("v_add_u32 v41, s23, v40")
    a(f"v_lshlrev_b32 v42, 5, v{vC}")
    a(f"v_lshl_add_u32 v42, v{vG}, 3, v42")
    a("s_lshl_b32 s22, s96, 10")
    a("v_add_u32 v42, s22, v42")
    a(f"v_add_u32 v43, v42, v{vBase}")
    a("s_lshl_b32 s22, s20, 12")
    a("v_add_u32 v42, s22, v42")
    a("s_waitcnt lgkmcnt(0)")
    a("s_barrier")
    for src in range(4):
        for k in range(2):
            b = 64 + 8 * src + 4 * k
            a(f"ds_read_b128 v[{b}:{b+3}], v41 offset:{8192*src+1024*k}")
    for k in range(2):
        a(f"ds_read_b64 v[{48+2*k}:{49+2*k}], v43 offset:{U0+32+512*k}")
    a("s_waitcnt lgkmcnt(0)")
    for i in range(8):
        a(f"v_add_f32 v{64+i}, v{64+i}, v{72+i}")
        a(f"v_add_f32 v{80+i}, v{80+i}, v{88+i}")
    for i in range(8):
        a(f"v_add_f32 v{i}, v{64+i}, v{80+i}")
    for k in range(2):
        y = 4 * k
        a(f"v_cvt_pk_bf16_f32 v56, v{y}, v{y+1}")
        a(f"v_cvt_pk_bf16_f32 v57, v{y+2}, v{y+3}")
        a(f"v_lshlrev_b32 v{y}, 16, v56")
        a(f"v_and_b32 v{y+1}, 0xffff0000, v56")
        a(f"v_lshlrev_b32 v{y+2}, 16, v57")
        a(f"v_and_b32 v{y+3}, 0xffff0000, v57")
        a(f"v_lshlrev_b32 v58, 16, v{48+2*k}")
        a(f"v_and_b32 v59, 0xffff0000, v{48+2*k}")
        a(f"v_lshlrev_b32 v60, 16, v{49+2*k}")
        a(f"v_and_b32 v61, 0xffff0000, v{49+2*k}")
        for i in range(4):
            a(f"v_mul_f32 v{58+i}, v{58+i}, v{vDsk}")
        a("v_cvt_pk_bf16_f32 v56, v58, v59")
        a("v_cvt_pk_bf16_f32 v57, v60, v61")
        a("v_lshlrev_b32 v58, 16, v56")
        a("v_and_b32 v59, 0xffff0000, v56")
        a("v_lshlrev_b32 v60, 16, v57")
        a("v_and_b32 v61, 0xffff0000, v57")
        for i in range(4):
            a(f"v_add_f32 v{y+i}, v{y+i}, v{58+i}")
        a(f"v_cvt_pk_bf16_f32 v{62+2*k}, v{y}, v{y+1}")
        a(f"v_cvt_pk_bf16_f32 v{63+2*k}, v{y+2}, v{y+3}")
        a(f"buffer_store_dwordx2 v[{62+2*k}:{63+2*k}], v42, s[52:55], 0 offen offset:{512*k}")
    stamp(a, 6)
    stamp_flush(a, 2, 7, 16, 17)
    a.label("KA_END")
    a("s_endpgm")
    return kernel_desc("ka_kernel", 256), f"; @launch kernel=ka_kernel grid=(256,1,1) block=(512,1,1) lds={2*DSZ}"
```

```python
from gen import *

U0, U1, KH, KL, PR, KC, SC, PKS, DSZ = 0, 4160, 8320, 12928, 17536, 19584, 22656, 55424, 64128
L2E = "0x3fb8aa3b"
L2E_LO = "0x32a57060"
LN2 = "0x3f317218"


def exp_acc(a, d, x, t1, t2):
    a(f"v_mul_f32 v{t1}, {L2E}, v{x}")
    a(f"v_mov_b32 v{t2}, {L2E}")
    a(f"v_fma_f32 v{t2}, v{x}, v{t2}, -v{t1}")
    a(f"v_fmac_f32 v{t2}, {L2E_LO}, v{x}")
    a(f"v_exp_f32 v{d}, v{t1}")
    a(f"v_mul_f32 v{t2}, {LN2}, v{t2}")
    a(f"v_fmac_f32 v{d}, v{d}, v{t2}")


def gen_a(a):
    kernel_head(a, "ka_kernel")
    a("s_cmp_ge_u32 s2, 256")
    a("s_cbranch_scc1 KA_END")
    a(f"s_load_dwordx4 s[4:7], s[0:1], {KA_LOGA}")
    a(f"s_load_dwordx4 s[8:11], s[0:1], {KA_CRE}")
    a(f"s_load_dwordx4 s[12:15], s[0:1], {KA_LOGDT}")
    a(f"s_load_dwordx4 s[60:63], s[0:1], {KA_DBG}")
    a(f"s_load_dwordx2 s[64:65], s[0:1], {KA_X}")
    a(f"s_load_dwordx2 s[92:93], s[0:1], {KA_W1}")
    a(f"s_load_dwordx2 s[94:95], s[0:1], {KA_W2}")
    vT, vLane, vBb, vAb, vDsk, vBase, vC, vG = 224, 225, 226, 227, 231, 232, 233, 234
    a(f"v_and_b32 v{vT}, 255, v0")
    a(f"v_and_b32 v{vLane}, 63, v0")
    a("v_lshrrev_b32 v1, 6, v0")
    a("v_readfirstlane_b32 s18, v1")
    a("s_lshr_b32 s19, s18, 2")
    a("s_and_b32 s96, s18, 3")
    a("s_lshl_b32 s20, s2, 1")
    a("s_add_u32 s20, s20, s19")
    a(f"s_mul_i32 s21, s19, {DSZ}")
    a(f"v_mov_b32 v{vBase}, s21")
    a("s_waitcnt lgkmcnt(0)")
    a("s_mov_b32 s16, s62")
    a("s_mov_b32 s17, s63")
    srd(a, 84, 64, 65, 0x200000)
    srd(a, 88, 60, 61, 0x100)
    a("s_lshl_b32 s22, s2, 13")
    a("v_lshlrev_b32 v1, 4, v0")
    a("v_add_u32 v1, s22, v1")
    a("buffer_load_dwordx4 v[112:115], v1, s[84:87], 0 offen")
    srd(a, 24, 4, 5, 0x20000)
    srd(a, 28, 6, 7, 0x20000)
    srd(a, 32, 8, 9, 0x20000)
    srd(a, 36, 10, 11, 0x20000)
    srd(a, 40, 12, 13, 0x400)
    srd(a, 44, 14, 15, 0x400)
    srd(a, 48, 16, 17, 0x200000, WS_UT)
    srd(a, 52, 16, 17, 0x200000, WS_AT)
    srd(a, 56, 16, 17, 0x400000, WS_W1T)
    a("s_lshl_b32 s22, s20, 8")
    a(f"v_and_b32 v1, 127, v{vT}")
    a("v_lshl_add_u32 v1, v1, 1, s22")
    a("buffer_load_ushort v4, v1, s[24:27], 0 offen")
    a("buffer_load_ushort v5, v1, s[28:31], 0 offen")
    a("buffer_load_ushort v6, v1, s[32:35], 0 offen")
    a("buffer_load_ushort v7, v1, s[36:39], 0 offen")
    a("s_lshl_b32 s22, s20, 1")
    a("v_mov_b32 v2, s22")
    a("buffer_load_ushort v8, v2, s[40:43], 0 offen")
    a(f"buffer_load_ushort v{vDsk}, v2, s[44:47], 0 offen")

    def pack_setup(rnd, sr, sk):
        a(f"s_add_u32 s22, s20, {512*rnd}")
        a("s_cmp_lt_u32 s22, 352")
        a(f"s_cselect_b32 s{sr}, s92, s94")
        a(f"s_cselect_b32 s{sr+1}, s93, s95")
        a(f"s_mov_b32 s{sk+2}, {D}")
        a(f"s_cselect_b32 s{sk+2}, {F}, s{sk+2}")
        a(f"s_lshl_b32 s{sk+3}, s{sk+2}, 1")
        a("s_cmp_lt_u32 s22, 352")
        a(f"s_cselect_b32 s{sk+4}, 16, 43")
        a(f"s_cselect_b32 s{sk+5}, 0, {WS_W2T-WS_W1T}")
        a(f"s_and_b32 s{sr+1}, s{sr+1}, 0xffff")
        a(f"s_mov_b32 s{sr+2}, {D*F*2}")
        a(f"s_mov_b32 s{sr+3}, 0x20000")
        a("s_and_b32 s23, s22, 15")
        a("s_lshr_b32 s97, s22, 4")
        a("s_sub_u32 s98, s22, 352")
        a("s_lshr_b32 s99, s98, 3")
        a("s_and_b32 s98, s98, 7")
        a(f"s_cselect_b32 s{sk}, s23, s99")
        a("s_cmp_lt_u32 s22, 352")
        a(f"s_cselect_b32 s{sk}, s23, s99")
        a(f"s_cselect_b32 s{sk+1}, s97, s98")
        a(f"s_lshl_b32 s{sk}, s{sk}, 5")
        a(f"s_lshl_b32 s{sk+1}, s{sk+1}, 6")

    pack_setup(0, 4, 24)
    pack_setup(1, 8, 30)
    a(f"v_lshrrev_b32 v9, 3, v{vT}")
    a(f"v_and_b32 v10, 7, v{vT}")
    for rnd, sr, sk, dreg in ((0, 4, 24, 236), (1, 8, 30, 240)):
        a("v_lshlrev_b32 v11, 3, v10")
        a(f"v_add_u32 v11, s{sk+1}, v11")
        a(f"v_add_u32 v12, s{sk}, v9")
        a(f"v_mul_lo_u32 v12, v12, s{sk+3}")
        a("v_lshl_add_u32 v12, v11, 1, v12")
        a(f"v_cmp_gt_u32 vcc, s{sk+2}, v11")
        a("v_mov_b32 v13, 0x7ffffff0")
        a("v_cndmask_b32 v12, v13, v12, vcc")
        if rnd == 1:
            a("s_cmp_ge_u32 s20, 184")
            a(f"s_cselect_b32 s{sr+2}, 0, s{sr+2}")
        a(f"buffer_load_dwordx4 v[{dreg}:{dreg+3}], v12, s[{sr}:{sr+3}], 0 offen")

    a(f"v_lshlrev_b32 v9, 3, v{vT}")
    a("v_sub_u32 v9, 2047, v9")
    a(f"v_add_u32 v15, {KC}, v{vBase}")
    for k in range(8):
        a(f"v_subrev_u32 v10, {k}, v9")
        a("v_cvt_f32_u32 v10, v10")
        a("v_cvt_pk_bf16_f32 v10, v10, v10")
        a("v_and_b32 v10, 0xffff0000, v10")
        a("v_cvt_u32_f32 v11, v10")
        a("v_bfe_u32 v10, v10, 23, 8")
        a("v_subrev_u32 v10, 134, v10")
        a("v_med3_i32 v10, v10, 0, 3")
        a("v_lshrrev_b32 v12, 7, v11")
        a("v_and_b32 v13, 7, v11")
        a("v_bfe_u32 v11, v11, 3, 4")
        a("v_sub_u32 v14, 3, v10")
        a("v_lshlrev_b32 v12, v14, v12")
        a("v_lshrrev_b32 v13, v10, v13")
        a("v_lshl_add_u32 v12, v10, 3, v12")
        a("v_add_u32 v12, v12, v13")
        a("v_lshl_add_u32 v12, v12, 4, v11")
        a(f"v_lshl_add_u32 v{16+k}, v12, 2, v15")
    a(f"v_and_b32 v{vC}, 15, v{vLane}")
    a(f"v_lshrrev_b32 v{vG}, 4, v{vLane}")
    a(f"v_cmp_le_u32 vcc, 8, v{vC}")
    a(f"v_add_u32 v9, 120, v{vC}")
    a(f"v_cndmask_b32 v44, v{vC}, v9, vcc")
    a("v_cvt_f32_u32 v44, v44")
    a(f"v_lshrrev_b32 v9, 2, v{vC}")
    a("v_lshlrev_b32 v9, 7, v9")
    a(f"v_and_b32 v10, 3, v{vC}")
    a("v_lshl_add_u32 v9, v10, 1, v9")
    a("v_add_u32 v9, 256, v9")
    a(f"v_subrev_u32 v10, 8, v{vC}")
    a("v_lshrrev_b32 v10, 1, v10")
    a("v_lshlrev_b32 v10, 7, v10")
    a(f"v_and_b32 v11, 1, v{vC}")
    a("v_lshl_add_u32 v10, v11, 2, v10")
    a("v_add_u32 v10, 512, v10")
    a("v_cndmask_b32 v45, v9, v10, vcc")
    a("v_cvt_f32_u32 v45, v45")
    a(f"v_lshlrev_b32 v9, 7, v{vC}")
    a("v_add_u32 v9, 1024, v9")
    a("v_min_u32 v9, 2048, v9")
    a("v_cvt_f32_u32 v46, v9")
    a(f"v_lshlrev_b32 v9, 3, v{vC}")
    a("v_cvt_f32_u32 v47, v9")
    a("s_lshl_b32 s22, s96, 9")
    a(f"s_add_u32 s22, s22, {PR}")
    a(f"v_lshl_add_u32 v48, v{vG}, 6, v{vBase}")
    a("v_add_u32 v48, s22, v48")

    a("s_waitcnt vmcnt(8)")
    stamp(a, 1)
    a(f"v_lshlrev_b32 v2, 4, v{vLane}")
    a("s_lshl_b32 s22, s18, 1")
    a("v_add_u32 v2, s22, v2")
    unpack8(a, 120, 112)
    layernorm(a, 120, 128, 136, 66)
    for e in range(8):
        op = "ds_write_b16" if e % 2 == 0 else "ds_write_b16_d16_hi"
        a(f"{op} v2, v{128+e//2} offset:{e*1040}")
    a("v_and_b32 v3, 7, v0")
    a("v_mul_u32_u24 v3, 65, v3")
    a("v_lshrrev_b32 v1, 3, v0")
    a("v_add_lshl_u32 v3, v3, v1, 4")
    a("s_lshl_b32 s22, s2, 13")
    a("v_lshlrev_b32 v1, 4, v0")
    a("v_add_u32 v1, s22, v1")
    a("s_waitcnt lgkmcnt(0)")
    a("s_barrier")
    a("ds_read_b128 v[120:123], v3")

    a("s_waitcnt lgkmcnt(0)")
    a("buffer_store_dwordx4 v[120:123], v1, s[48:51], 0 offen sc1")
    a("s_waitcnt vmcnt(3)")
    for r in (4, 5, 6, 7, 8, vDsk):
        a(f"v_lshlrev_b32 v{r}, 16, v{r}")
    exp_acc(a, 9, 8, 10, 15)
    bf16r(a, 9, 9)
    exp_acc(a, 128, 4, 10, 15)
    bf16r(a, 128, 128)
    a("v_mul_f32 v128, v128, v9")
    a("v_mul_f32 v128, 0xbfb8aa3b, v128")
    a("v_mul_f32 v129, v5, v9")
    a("v_mul_f32 v129, 0.15915494, v129")
    a("v_mul_f32 v130, v6, v9")
    a("v_add_f32 v130, v130, v130")
    a("v_mul_f32 v131, v7, v9")
    a("v_add_f32 v131, v131, v131")
    a(f"v_and_b32 v9, 127, v{vT}")
    a(f"v_lshl_add_u32 v9, v9, 4, v{vBase}")
    a(f"ds_write_b128 v9, v[128:131] offset:{PR}")
    for i in range(12):
        a(f"v_mov_b32 v{96+i}, 0")
    a("s_waitcnt lgkmcnt(0)")
    a("s_barrier")
    stamp(a, 2)

    def kgen(ms):
        out = []
        for nn in range(4):
            pb = 128 + 4 * nn
            ent = [(47, None, 60, 64), (44, 1, 68, 72), (45, 1, 76, 80), (46, 1, 84, 88)]
            for n_, (y, isA, oh, ol) in enumerate(ent):
                e = 144 + 8 * n_
                c, o, h = e + 2, e + 4, e + 6
                yp = (y // 2) * 2
                sel = "op_sel_hi:[1,0]" if y % 2 == 0 else "op_sel:[0,1] op_sel_hi:[1,1]"
                out.append(f"v_pk_mul_f32 v[{e}:{e+1}], v[{pb}:{pb+1}], v[{yp}:{yp+1}] {sel}")
                out.append(f"v_exp_f32 v{e}, v{e}")
                out.append(f"v_fract_f32 v{e+1}, v{e+1}")
                out.append(f"v_cos_f32 v{c}, v{e+1}")
                out.append(f"v_sin_f32 v{c+1}, v{e+1}")
                if not isA:
                    out.append(f"v_pk_mul_f32 v[{o}:{o+1}], v[{c}:{c+1}], v[{e}:{e+1}] op_sel_hi:[1,0]")
                else:
                    out.append(f"v_pk_mul_f32 v[{c}:{c+1}], v[{c}:{c+1}], v[{e}:{e+1}] op_sel_hi:[1,0]")
                    out.append(f"v_pk_mul_f32 v[{o}:{o+1}], v[{pb+2}:{pb+3}], v[{c}:{c+1}] op_sel_hi:[1,0]")
                    out.append(f"v_pk_fma_f32 v[{o}:{o+1}], v[{pb+2}:{pb+3}], v[{c}:{c+1}], v[{o}:{o+1}] op_sel:[1,1,0] op_sel_hi:[0,1,1] neg_lo:[1,0,0] neg_hi:[1,0,1]")
                out.append(f"v_cvt_pk_bf16_f32 v{oh+nn}, v{o}, v{o+1}")
                out.append(f"v_lshlrev_b32 v{h}, 16, v{oh+nn}")
                out.append(f"v_and_b32 v{h+1}, 0xffff0000, v{oh+nn}")
                out.append(f"v_pk_add_f32 v[{o}:{o+1}], v[{o}:{o+1}], v[{h}:{h+1}] neg_lo:[0,1] neg_hi:[0,1]")
                out.append(f"v_cvt_pk_bf16_f32 v{ol+nn}, v{o}, v{o+1}")
        return out

    for ms in range(2):
        for nn in range(4):
            a(f"ds_read_b128 v[{128+4*nn}:{131+4*nn}], v48 offset:{256*ms+16*nn}")
        a("s_waitcnt lgkmcnt(0)")
        KG = kgen(ms)
        for ii, ins in enumerate(KG):
            a(ins)
            if ms == 0 and ii == len(KG) // 2:
                a("s_waitcnt vmcnt(0)")
                a("s_barrier")
                a("s_and_b32 s22, s2, 63")
                a("s_lshl_b32 s22, s22, 2")
                a("v_mov_b32 v1, s22")
                a("v_mov_b32 v2, 1")
                a("v_cmp_eq_u32 vcc, 0, v0")
                a("s_and_saveexec_b64 s[36:37], vcc")
                a("s_cbranch_execz KA_ARR")
                a("buffer_atomic_add v2, v1, s[88:91], 0 offen sc1")
                a.label("KA_ARR")
                a("s_mov_b64 exec, s[36:37]")

        for gmm in range(3):
            ac = 96 + 4 * gmm
            Ah, Al = 68 + 8 * gmm, 72 + 8 * gmm
            a(f"v_mfma_f32_16x16x32_bf16 v[{ac}:{ac+3}], v[{Ah}:{Ah+3}], v[60:63], v[{ac}:{ac+3}]")
            a(f"v_mfma_f32_16x16x32_bf16 v[{ac}:{ac+3}], v[{Ah}:{Ah+3}], v[64:67], v[{ac}:{ac+3}]")
            a(f"v_mfma_f32_16x16x32_bf16 v[{ac}:{ac+3}], v[{Al}:{Al+3}], v[60:63], v[{ac}:{ac+3}]")
        if ms == 0:
            a.nop(32)
    a.nop(32)
    stamp(a, 3)
    a("s_mul_i32 s22, s96, 3072")
    a(f"s_add_u32 s22, s22, {SC}")
    a(f"v_lshl_add_u32 v9, v{vG}, 8, v{vBase}")
    a(f"v_lshl_add_u32 v9, v{vC}, 2, v9")
    a("v_add_u32 v9, s22, v9")
    for gmm in range(3):
        for r in range(4):
            a(f"ds_write_b32 v9, v{96+4*gmm+r} offset:{gmm*1024+r*64}")
    a(f"v_lshlrev_b32 v1, 2, v{vLane}")
    a("s_cmp_lg_u32 s18, 0")
    a("s_cbranch_scc1 KA_GO")
    a.label("KA_POLL")
    a("buffer_load_dword v2, v1, s[88:91], 0 offen sc1")
    a("s_waitcnt vmcnt(0)")
    a("v_cmp_ne_u32 vcc, 4, v2")
    a("s_cmp_eq_u64 vcc, 0")
    a("s_cbranch_scc1 KA_GO")
    a("s_sleep 4")
    a("s_branch KA_POLL")
    a.label("KA_GO")
    a("s_barrier")
    a("s_lshl_b32 s22, s20, 4")
    a(f"v_lshl_add_u32 v3, v{vT}, 13, s22")
    a("v_add_u32 v4, 0x2000, v3")
    a("buffer_load_dwordx4 v[32:35], v3, s[48:51], 0 offen sc1")
    a("buffer_load_dword v36, v4, s[48:51], 0 offen sc1")
    a(f"v_lshl_add_u32 v10, v{vT}, 4, v{vBase}")
    for i in range(4):
        a(f"v_mov_b32 v{60+i}, 0")
    a(f"v_cmp_gt_u32 vcc, 30, v{vT}")
    a("s_and_saveexec_b64 s[36:37], vcc")
    a("s_cbranch_execz KA_Z2")
    a(f"ds_write_b128 v10, v[60:63] offset:{KH+4096}")
    a(f"ds_write_b128 v10, v[60:63] offset:{KL+4096}")
    a.label("KA_Z2")
    a("s_mov_b64 exec, s[36:37]")
    a(f"v_lshl_add_u32 v11, v{vT}, 2, v{vBase}")
    a("s_waitcnt lgkmcnt(0)")
    a("s_barrier")
    a(f"v_add_u32 v15, {SC}, v11")
    for j in range(3):
        a(f"ds_read2st64_b32 v[{64+4*j}:{65+4*j}], v15 offset0:{4*j} offset1:{4*j+12}")
        a(f"ds_read2st64_b32 v[{66+4*j}:{67+4*j}], v15 offset0:{4*j+24} offset1:{4*j+36}")
    a("s_waitcnt lgkmcnt(0)")
    for j in range(3):
        a(f"v_add_f32 v{64+4*j}, v{64+4*j}, v{65+4*j}")
        a(f"v_add_f32 v{66+4*j}, v{66+4*j}, v{67+4*j}")
        a(f"v_add_f32 v{64+4*j}, v{64+4*j}, v{66+4*j}")
        a(f"ds_write_b32 v11, v{64+4*j} offset:{KC+1024*j}")
    a(f"v_lshrrev_b32 v9, 1, v{vG}")
    a(f"v_and_b32 v15, 1, v{vG}")
    a(f"v_sub_u32 v12, v9, v{vC}")
    a("v_lshlrev_b32 v12, 5, v12")
    a("v_lshlrev_b32 v13, 4, v15")
    a("v_sub_u32 v12, v12, v13")
    a("s_lshl_b32 s22, s96, 7")
    a(f"s_add_u32 s23, s22, {KH+496}")
    a(f"v_add3_u32 v{vBb}, v12, v{vBase}, s23")
    a(f"v_add_u32 v12, 1, v{vC}")
    a("v_and_b32 v12, 1, v12")
    a("v_lshlrev_b32 v13, 4, v9")
    a(f"v_add_u32 v13, v13, v{vC}")
    a("v_lshlrev_b32 v14, 3, v15")
    a("v_sub_u32 v13, v13, v14")
    a("v_sub_u32 v13, v13, v12")
    a("v_add_u32 v13, 9, v13")
    a("v_lshlrev_b32 v13, 1, v13")
    a("v_mul_u32_u24 v14, 4160, v12")
    a("v_add_u32 v13, v13, v14")
    a(f"v_add3_u32 v{vAb}, v13, v{vBase}, s22")
    for i in range(1, 4):
        a(f"v_add_u32 v{vAb+i}, {1024*i}, v{vAb}")
    a("s_waitcnt lgkmcnt(0)")
    a("s_barrier")
    for k in range(8):
        a(f"ds_read_b32 v{64+k}, v{16+k}")
    a("s_waitcnt lgkmcnt(0)")
    for k in range(4):
        x0, x1 = 64 + 2 * k, 65 + 2 * k
        a(f"v_cvt_pk_bf16_f32 v{96+k}, v{x0}, v{x1}")
        a(f"v_lshlrev_b32 v72, 16, v{96+k}")
        a(f"v_and_b32 v73, 0xffff0000, v{96+k}")
        a(f"v_sub_f32 v{x0}, v{x0}, v72")
        a(f"v_sub_f32 v{x1}, v{x1}, v73")
        a(f"v_cvt_pk_bf16_f32 v{100+k}, v{x0}, v{x1}")
    a(f"ds_write_b128 v10, v[96:99] offset:{KH}")
    a(f"ds_write_b128 v10, v[100:103] offset:{KL}")
    a("s_waitcnt vmcnt(0)")
    a(f"ds_write_b128 v10, v[32:35] offset:{U0+32}")
    for k in range(4):
        a(f"v_alignbit_b32 v{44+k}, v{33+k}, v{32+k}, 16")
    a(f"ds_write_b128 v10, v[44:47] offset:{U1+32}")
    for k in range(3):
        a(f"v_mov_b32 v{52+k}, 0")
    a("v_lshlrev_b32 v55, 16, v32")
    a(f"v_cmp_eq_u32 vcc, 0, v{vT}")
    a("s_and_saveexec_b64 s[36:37], vcc")
    a("s_cbranch_execz KA_Z1")
    a(f"ds_write_b128 v{vBase}, v[60:63] offset:{U0}")
    a(f"ds_write_b128 v{vBase}, v[60:63] offset:{U0+16}")
    a(f"ds_write_b128 v{vBase}, v[60:63] offset:{U1}")
    a(f"ds_write_b128 v{vBase}, v[52:55] offset:{U1+16}")
    a.label("KA_Z1")
    a("s_mov_b64 exec, s[36:37]")
    a("s_waitcnt lgkmcnt(0)")
    a("s_barrier")
    stamp(a, 4)

    def reads(ri):
        sb = 32 + 96 * ri
        aq = []
        for q in range(8):
            ab = sb + 64 + 4 * q
            o = 16 * ri + 128 * (q & 1)
            aq.append([f"ds_read2_b32 v[{ab}:{ab+1}], v{vAb+(q>>1)} offset0:{o} offset1:{o+1}",
                       f"ds_read2_b32 v[{ab+2}:{ab+3}], v{vAb+(q>>1)} offset0:{o+2} offset1:{o+3}"])
        seq = list(aq[0])
        for p in range(7, -1, -1):
            seq.append(f"ds_read_b128 v[{sb+4*p}:{sb+4*p+3}], v{vBb} offset:{512*(7-p)+64*ri}")
            seq.append(f"ds_read_b128 v[{sb+32+4*p}:{sb+32+4*p+3}], v{vBb} offset:{4608+512*(7-p)+64*ri}")
        for q in range(1, 8):
            seq += aq[q]
        return seq

    def mfmas(ri):
        sb = 32 + 96 * ri
        out = []
        for q in range(8):
            ab = sb + 64 + 4 * q
            for t in range(7, q - 1, -1):
                p = t - q
                out.append(f"v_mfma_f32_16x16x32_bf16 v[{4*t}:{4*t+3}], v[{ab}:{ab+3}], v[{sb+4*p}:{sb+4*p+3}], v[{4*t}:{4*t+3}]")
                out.append(f"v_mfma_f32_16x16x32_bf16 v[{4*t}:{4*t+3}], v[{ab}:{ab+3}], v[{sb+32+4*p}:{sb+32+4*p+3}], v[{4*t}:{4*t+3}]")
        return out

    PK1 = [f"v_lshrrev_b32 v248, 3, v{vT}", f"v_and_b32 v249, 7, v{vT}", "v_mul_u32_u24 v244, 544, v249",
           "v_lshl_add_u32 v244, v248, 1, v244", f"v_add_u32 v244, {PKS}, v244", f"v_add_u32 v244, v244, v{vBase}",
           f"v_lshrrev_b32 v246, 2, v{vT}", f"v_and_b32 v247, 3, v{vT}", "v_mul_u32_u24 v245, 68, v246",
           "v_lshl_add_u32 v245, v247, 4, v245", f"v_add_u32 v245, {PKS}, v245", f"v_add_u32 v245, v245, v{vBase}"]
    for e in range(8):
        op = "ds_write_b16" if e % 2 == 0 else "ds_write_b16_d16_hi"
        PK1.append(f"{op} v244, v{236+e//2} offset:{e*68}")
        PK1.append(f"{op} v244, v{240+e//2} offset:{4352+e*68}")

    def pack_store(sk, off4):
        return [f"ds_read2_b32 v[252:253], v245 offset0:{off4} offset1:{off4+1}" if off4 + 3 < 256 else None,
                f"v_add_u32 v248, s{sk+1}, v246", "v_lshrrev_b32 v249, 5, v248", "v_bfe_u32 v250, v248, 2, 1",
                "v_lshl_add_u32 v249, v249, 1, v250", f"v_mul_lo_u32 v249, v249, s{sk+4}", f"s_lshr_b32 s22, s{sk}, 5",
                "v_add_u32 v249, s22, v249", "v_lshlrev_b32 v249, 10, v249", "v_bfe_u32 v250, v248, 3, 2",
                "v_and_b32 v251, 3, v248", "v_lshl_add_u32 v250, v250, 2, v251", "v_lshl_add_u32 v250, v247, 4, v250",
                "v_lshl_add_u32 v249, v250, 4, v249", f"v_add_u32 v249, s{sk+5}, v249", f"v_cmp_gt_u32 vcc, s{sk+2}, v248",
                "v_mov_b32 v250, 0x7ffffff0", "v_cndmask_b32 v249, v250, v249, vcc"]
    PK2 = []
    for rnd, sk in ((0, 24), (1, 30)):
        lst = pack_store(sk, 0)[1:]
        PK2 += lst
        if rnd == 1:
            PK2 += ["v_add_u32 v245, 4352, v245", "s_cmp_ge_u32 s20, 184", "s_cselect_b32 s38, 0, s58"]
        else:
            PK2 += ["s_mov_b32 s38, s58"]
        PK2 += ["ds_read2_b32 v[252:253], v245 offset0:0 offset1:1", "ds_read2_b32 v[254:255], v245 offset0:2 offset1:3",
                "s_waitcnt lgkmcnt(0)", "s_mov_b32 s36, s56", "s_mov_b32 s37, s57", "s_mov_b32 s39, s59",
                "buffer_store_dwordx4 v[252:255], v249, s[36:39], 0 offen", "s_nop 1"]
    for r_ in reads(0):
        a(r_)
    for i in range(32):
        a(f"v_mov_b32 v{i}, 0")
    for ri in range(2):
        a("s_waitcnt lgkmcnt(0)")
        R = reads(1) if ri == 0 else []
        k = 0
        for i, m in enumerate(mfmas(ri)):
            a(m)
            if i % 2 == 1 and k < len(R):
                a(R[k]); k += 1
            PK = PK1 if ri == 0 else PK2
            if i >= 4 and (ri == 1 or i % 2 == 0) and PK:
                a(PK.pop(0))
        assert k == len(R)
        if ri == 0:
            while PK1:
                a(PK1.pop(0))
            a("s_waitcnt lgkmcnt(0)")
            a("s_barrier")
    assert not PK2
    a.nop(32)
    stamp(a, 5)
    a("s_lshl_b32 s22, s96, 13")
    a(f"s_add_u32 s22, s22, {SC}")
    a(f"v_lshl_add_u32 v40, v{vLane}, 4, v{vBase}")
    a("v_add_u32 v41, s22, v40")
    for t in range(8):
        a(f"ds_write_b128 v41, v[{4*t}:{4*t+3}] offset:{1024*t}")
    a("s_lshl_b32 s22, s96, 11")
    a(f"s_add_u32 s23, s22, {SC}")
    a("v_add_u32 v41, s23, v40")
    a(f"v_lshlrev_b32 v42, 5, v{vC}")
    a(f"v_lshl_add_u32 v42, v{vG}, 3, v42")
    a("s_lshl_b32 s22, s96, 10")
    a("v_add_u32 v42, s22, v42")
    a(f"v_add_u32 v43, v42, v{vBase}")
    a("s_lshl_b32 s22, s20, 12")
    a("v_add_u32 v42, s22, v42")
    a("s_waitcnt lgkmcnt(0)")
    a("s_barrier")
    for src in range(4):
        for k in range(2):
            b = 64 + 8 * src + 4 * k
            a(f"ds_read_b128 v[{b}:{b+3}], v41 offset:{8192*src+1024*k}")
    for k in range(2):
        a(f"ds_read_b64 v[{48+2*k}:{49+2*k}], v43 offset:{U0+32+512*k}")
    a("s_waitcnt lgkmcnt(0)")
    for i in range(8):
        a(f"v_add_f32 v{64+i}, v{64+i}, v{72+i}")
        a(f"v_add_f32 v{80+i}, v{80+i}, v{88+i}")
    for i in range(8):
        a(f"v_add_f32 v{i}, v{64+i}, v{80+i}")
    for k in range(2):
        y = 4 * k
        a(f"v_cvt_pk_bf16_f32 v56, v{y}, v{y+1}")
        a(f"v_cvt_pk_bf16_f32 v57, v{y+2}, v{y+3}")
        a(f"v_lshlrev_b32 v{y}, 16, v56")
        a(f"v_and_b32 v{y+1}, 0xffff0000, v56")
        a(f"v_lshlrev_b32 v{y+2}, 16, v57")
        a(f"v_and_b32 v{y+3}, 0xffff0000, v57")
        a(f"v_lshlrev_b32 v58, 16, v{48+2*k}")
        a(f"v_and_b32 v59, 0xffff0000, v{48+2*k}")
        a(f"v_lshlrev_b32 v60, 16, v{49+2*k}")
        a(f"v_and_b32 v61, 0xffff0000, v{49+2*k}")
        for i in range(4):
            a(f"v_mul_f32 v{58+i}, v{58+i}, v{vDsk}")
        a("v_cvt_pk_bf16_f32 v56, v58, v59")
        a("v_cvt_pk_bf16_f32 v57, v60, v61")
        a("v_lshlrev_b32 v58, 16, v56")
        a("v_and_b32 v59, 0xffff0000, v56")
        a("v_lshlrev_b32 v60, 16, v57")
        a("v_and_b32 v61, 0xffff0000, v57")
        for i in range(4):
            a(f"v_add_f32 v{y+i}, v{y+i}, v{58+i}")
        a(f"v_cvt_pk_bf16_f32 v{62+2*k}, v{y}, v{y+1}")
        a(f"v_cvt_pk_bf16_f32 v{63+2*k}, v{y+2}, v{y+3}")
        a(f"buffer_store_dwordx2 v[{62+2*k}:{63+2*k}], v42, s[52:55], 0 offen offset:{512*k}")
    stamp(a, 6)
    stamp_flush(a, 2, 7, 16, 17)
    a.label("KA_END")
    a("s_endpgm")
    return kernel_desc("ka_kernel", 256), f"; @launch kernel=ka_kernel grid=(256,1,1) block=(512,1,1) lds={2*DSZ}"
```

```python
import re

TRANS = ("v_exp_f32", "v_log_f32", "v_rcp_f32", "v_rsq_f32", "v_sqrt_f32", "v_sin_f32", "v_cos_f32")
REG_RE = re.compile(r"\b([vsa])\[(\d+):(\d+)\]|\b([vsa])(\d+)\b|\b(vcc|exec|m0)\b")


def regs_of(tok):
    out = []
    for m in REG_RE.finditer(tok):
        if m.group(1):
            for i in range(int(m.group(2)), int(m.group(3)) + 1):
                out.append((m.group(1), i))
        elif m.group(4):
            out.append((m.group(4), int(m.group(5))))
        else:
            out.append((m.group(6), 0))
    return out


def mfma_info(mn):
    if mn.endswith("_f32") and ("x4_f32" in mn or "x2_f32" in mn):
        return (8 if "16x16x4" in mn else 16, True)
    if "16x16x32" in mn or "16x16x16" in mn:
        return (4, False)
    if "32x32x16" in mn or "32x32x8" in mn:
        return (8, False)
    raise ValueError(mn)


class Asm:
    def __init__(self):
        self.lines = []
        self.pos = 0
        self.ev = []
        self.lds_out = 0

    def raw(self, text):
        self.lines.append(text)

    def comment(self, text):
        self.lines.append("    ; " + text)

    def label(self, name):
        self.lines.append(name + ":")

    def nop(self, n):
        while n > 0:
            k = min(n, 16)
            self.lines.append("    s_nop %d" % (k - 1))
            self.pos += k
            n -= k

    def flush(self):
        need = 0
        for (p, kind, regs, extra) in self.ev:
            if kind == "mfma":
                passes, sg = extra
                n = {2: 5, 4: 8, 8: 12, 16: 20}[passes]
            elif kind == "valu_s":
                n = 5
            else:
                n = 2
            need = max(need, p + n + 1 - self.pos)
        if need > 0:
            self.nop(need)
        self.ev = []

    def __call__(self, text):
        text = text.strip()
        mn = text.split()[0]
        rest = text[len(mn):]
        ops = [o.strip() for o in rest.split(",")]
        is_mfma = mn.startswith("v_mfma")
        is_valu = mn.startswith("v_") and not is_mfma
        is_vmem = mn.startswith("buffer_") or mn.startswith("global_")
        is_ds = mn.startswith("ds_")
        is_store = ("store" in mn) or mn.startswith("ds_write") or (mn.startswith("buffer_atomic") and "sc0" not in text)
        is_dpp = any(k in text for k in ("quad_perm", "row_shr", "row_shl", "row_ror", "row_mirror", "row_half_mirror", "row_bcast", "wave_shr", "row_newbcast"))
        is_lds_dma = is_vmem and (" lds" in text or "_lds_" in mn)
        allregs = regs_of(rest)
        dst, src = [], []
        if is_store or is_lds_dma:
            src = allregs
        elif is_valu or is_mfma or is_vmem or is_ds or mn.startswith("s_"):
            if ops and ops[0]:
                dst = regs_of(ops[0])
                src = regs_of(",".join(ops[1:]))
            if mn in ("v_fmac_f32", "v_fmac_f32_e32", "v_pk_fmac_f16") or mn.startswith("v_permlane") or mn.startswith("v_writelane") or is_dpp or "d16" in mn:
                src = src + dst
            if mn.startswith("v_permlane") or mn.startswith("v_swap"):
                dst = regs_of(ops[0]) + regs_of(ops[1])
                src = list(dst)
            if mn.startswith("v_add_co") or mn.startswith("v_addc_co") or mn.startswith("v_sub_co") or mn.startswith("v_div_scale"):
                dst = regs_of(ops[0]) + regs_of(ops[1])
                src = regs_of(",".join(ops[2:]))
            if mn.startswith("v_cndmask") and len(ops) == 3:
                src = src + [("vcc", 0)]
        if mn.startswith("s_cmp") or mn.startswith("s_cbranch") or mn in ("s_branch", "s_barrier", "s_waitcnt", "s_endpgm", "s_nop", "s_setprio", "s_sleep"):
            dst = []
            src = allregs
        srcset = set(src)
        dstset = set(dst)
        need = 0

        def req(p, n):
            nonlocal need
            need = max(need, p + n + 1 - self.pos)

        for (p, kind, regs, extra) in self.ev:
            rs = set(regs)
            if kind in ("valu", "trans", "opsel"):
                if rs & srcset:
                    if is_dpp:
                        req(p, 2)
                    if is_mfma:
                        req(p, 2)
                    if mn.startswith("v_readlane") or mn.startswith("v_readfirstlane"):
                        req(p, 1)
                    if mn.startswith("v_permlane"):
                        req(p, 2)
                    if kind == "trans" and (is_valu or is_mfma or is_ds or is_vmem):
                        req(p, 6)
                    if kind == "opsel" and is_valu:
                        req(p, 1)
                if kind == "opsel" and is_valu and (rs & dstset):
                    req(p, 1)
            elif kind == "valu_s":
                if rs & srcset:
                    if is_valu:
                        req(p, 4 if (mn.startswith("v_readlane") or mn.startswith("v_writelane")) else 2)
                    if is_vmem:
                        req(p, 5)
            elif kind == "mfma":
                passes, sg = extra
                tab = {2: 4, 4: 6, 8: 10, 16: 18} if sg else {2: 5, 4: 8, 8: 12, 16: 20}
                if is_mfma:
                    ab = set(regs_of(ops[1]) + regs_of(ops[2]))
                    c = regs_of(ops[3])
                    if rs & ab:
                        req(p, tab[passes])
                    if rs & set(c):
                        if list(regs) != c or mfma_info(mn) != extra:
                            req(p, {2: 4, 4: 6, 8: 10, 16: 18}[passes])
                        elif passes == 2:
                            req(p, 2)
                elif (is_valu or is_vmem or is_ds) and (rs & (srcset | dstset)):
                    req(p, tab[passes])
            elif kind == "mfma_c":
                passes, sg = extra
                if not sg and is_valu and (rs & dstset):
                    req(p, {2: 1, 4: 3, 8: 7, 16: 15}[passes])
            elif kind == "wstore":
                if (is_valu or is_mfma) and (rs & dstset):
                    req(p, 2)
                elif rs & dstset:
                    req(p, 1)
            elif kind == "m0":
                if is_lds_dma:
                    req(p, 1)
        if is_ds:
            if self.lds_out >= 14:
                self.lines.append("    s_waitcnt lgkmcnt(6)")
                self.pos += 1
                self.lds_out = 6
            self.lds_out += 1
        if mn == "s_waitcnt":
            m_ = re.search(r"lgkmcnt\((\d+)\)", text)
            if m_:
                self.lds_out = min(self.lds_out, int(m_.group(1)))
        if need > 0:
            self.nop(need)
        self.lines.append("    " + text)
        p = self.pos
        self.pos += 1
        if is_mfma:
            info = mfma_info(mn)
            self.ev.append((p, "mfma", dst, info))
            self.ev.append((p, "mfma_c", regs_of(ops[3]), info))
        elif is_valu:
            vd = [r for r in dst if r[0] in ("v", "a")]
            sd = [r for r in dst if r[0] in ("s", "vcc", "exec")]
            if mn.startswith("v_cmp") and not sd:
                sd = [("vcc", 0)]
            if vd:
                kind = "trans" if mn in TRANS else ("opsel" if (("op_sel" in text and not mn.startswith("v_pk_")) or "dst_sel" in text) else "valu")
                self.ev.append((p, kind, vd, None))
            if sd:
                self.ev.append((p, "valu_s", sd, None))
        elif is_store and is_vmem and ("x4" in mn or "x3" in mn):
            self.ev.append((p, "wstore", regs_of(ops[0]), None))
        elif mn.startswith("s_") and ("m0", 0) in dstset:
            self.ev.append((p, "m0", [("m0", 0)], None))
        self.ev = [e for e in self.ev if self.pos - e[0] <= 24]

    def text(self):
        return "\n".join(self.lines) + "\n"
```

```python
from gen import *

U0, U1, KH, KL, PR, KC, SC, DSZ = 0, 4160, 8320, 12928, 17536, 19584, 22656, 55424
L2E = "0x3fb8aa3b"
L2E_LO = "0x32a57060"
LN2 = "0x3f317218"


def exp_acc(a, d, x, t1, t2):
    a(f"v_mul_f32 v{t1}, {L2E}, v{x}")
    a(f"v_mov_b32 v{t2}, {L2E}")
    a(f"v_fma_f32 v{t2}, v{x}, v{t2}, -v{t1}")
    a(f"v_fmac_f32 v{t2}, {L2E_LO}, v{x}")
    a(f"v_exp_f32 v{d}, v{t1}")
    a(f"v_mul_f32 v{t2}, {LN2}, v{t2}")
    a(f"v_fmac_f32 v{d}, v{d}, v{t2}")


def gen_a(a):
    kernel_head(a, "ka_kernel")
    a("s_cmp_ge_u32 s2, 256")
    a("s_cbranch_scc1 KA_END")
    a(f"s_load_dwordx4 s[4:7], s[0:1], {KA_LOGA}")
    a(f"s_load_dwordx4 s[8:11], s[0:1], {KA_CRE}")
    a(f"s_load_dwordx4 s[12:15], s[0:1], {KA_LOGDT}")
    a(f"s_load_dwordx4 s[60:63], s[0:1], {KA_DBG}")
    a(f"s_load_dwordx2 s[64:65], s[0:1], {KA_X}")
    a(f"s_load_dwordx2 s[92:93], s[0:1], {KA_W1}")
    a(f"s_load_dwordx2 s[94:95], s[0:1], {KA_W2}")
    vT, vLane, vBb, vAb, vDsk, vBase, vC, vG = 224, 225, 226, 227, 231, 232, 233, 234
    a(f"v_and_b32 v{vT}, 255, v0")
    a(f"v_and_b32 v{vLane}, 63, v0")
    a("v_lshrrev_b32 v1, 6, v0")
    a("v_readfirstlane_b32 s18, v1")
    a("s_lshr_b32 s19, s18, 2")
    a("s_and_b32 s96, s18, 3")
    a("s_lshl_b32 s20, s2, 1")
    a("s_add_u32 s20, s20, s19")
    a(f"s_mul_i32 s21, s19, {DSZ}")
    a(f"v_mov_b32 v{vBase}, s21")
    a("s_waitcnt lgkmcnt(0)")
    a("s_mov_b32 s16, s62")
    a("s_mov_b32 s17, s63")
    srd(a, 84, 64, 65, 0x200000)
    srd(a, 88, 60, 61, 0x100)
    a("s_lshl_b32 s22, s2, 13")
    a("v_lshlrev_b32 v1, 4, v0")
    a("v_add_u32 v1, s22, v1")
    a("buffer_load_dwordx4 v[112:115], v1, s[84:87], 0 offen")
    srd(a, 24, 4, 5, 0x20000)
    srd(a, 28, 6, 7, 0x20000)
    srd(a, 32, 8, 9, 0x20000)
    srd(a, 36, 10, 11, 0x20000)
    srd(a, 40, 12, 13, 0x400)
    srd(a, 44, 14, 15, 0x400)
    srd(a, 48, 16, 17, 0x200000, WS_UT)
    srd(a, 52, 16, 17, 0x200000, WS_AT)
    srd(a, 56, 16, 17, 0x400000, WS_W1T)
    a("s_lshl_b32 s22, s20, 8")
    a(f"v_and_b32 v1, 127, v{vT}")
    a("v_lshl_add_u32 v1, v1, 1, s22")
    a("buffer_load_ushort v4, v1, s[24:27], 0 offen")
    a("buffer_load_ushort v5, v1, s[28:31], 0 offen")
    a("buffer_load_ushort v6, v1, s[32:35], 0 offen")
    a("buffer_load_ushort v7, v1, s[36:39], 0 offen")
    a("s_lshl_b32 s22, s20, 1")
    a("v_mov_b32 v2, s22")
    a("buffer_load_ushort v8, v2, s[40:43], 0 offen")
    a(f"buffer_load_ushort v{vDsk}, v2, s[44:47], 0 offen")

    def pack_setup(rnd, sr, sk):
        a(f"s_add_u32 s22, s20, {512*rnd}")
        a("s_cmp_lt_u32 s22, 352")
        a(f"s_cselect_b32 s{sr}, s92, s94")
        a(f"s_cselect_b32 s{sr+1}, s93, s95")
        a(f"s_mov_b32 s{sk+2}, {D}")
        a(f"s_cselect_b32 s{sk+2}, {F}, s{sk+2}")
        a(f"s_lshl_b32 s{sk+3}, s{sk+2}, 1")
        a("s_cmp_lt_u32 s22, 352")
        a(f"s_cselect_b32 s{sk+4}, 16, 43")
        a(f"s_cselect_b32 s{sk+5}, 0, {WS_W2T-WS_W1T}")
        a(f"s_and_b32 s{sr+1}, s{sr+1}, 0xffff")
        a(f"s_mov_b32 s{sr+2}, {D*F*2}")
        a(f"s_mov_b32 s{sr+3}, 0x20000")
        a("s_and_b32 s23, s22, 15")
        a("s_lshr_b32 s97, s22, 4")
        a("s_sub_u32 s98, s22, 352")
        a("s_lshr_b32 s99, s98, 3")
        a("s_and_b32 s98, s98, 7")
        a(f"s_cselect_b32 s{sk}, s23, s99")
        a("s_cmp_lt_u32 s22, 352")
        a(f"s_cselect_b32 s{sk}, s23, s99")
        a(f"s_cselect_b32 s{sk+1}, s97, s98")
        a(f"s_lshl_b32 s{sk}, s{sk}, 5")
        a(f"s_lshl_b32 s{sk+1}, s{sk+1}, 6")

    pack_setup(0, 4, 24)
    pack_setup(1, 8, 30)
    a(f"v_lshrrev_b32 v9, 3, v{vT}")
    a(f"v_and_b32 v10, 7, v{vT}")
    for rnd, sr, sk, dreg in ((0, 4, 24, 236), (1, 8, 30, 240)):
        a("v_lshlrev_b32 v11, 3, v10")
        a(f"v_add_u32 v11, s{sk+1}, v11")
        a(f"v_add_u32 v12, s{sk}, v9")
        a(f"v_mul_lo_u32 v12, v12, s{sk+3}")
        a("v_lshl_add_u32 v12, v11, 1, v12")
        a(f"v_cmp_gt_u32 vcc, s{sk+2}, v11")
        a("v_mov_b32 v13, 0x7ffffff0")
        a("v_cndmask_b32 v12, v13, v12, vcc")
        if rnd == 1:
            a("s_cmp_ge_u32 s20, 184")
            a(f"s_cselect_b32 s{sr+2}, 0, s{sr+2}")
        a(f"buffer_load_dwordx4 v[{dreg}:{dreg+3}], v12, s[{sr}:{sr+3}], 0 offen")

    a(f"v_lshlrev_b32 v9, 3, v{vT}")
    a("v_sub_u32 v9, 2047, v9")
    a(f"v_add_u32 v15, {KC}, v{vBase}")
    for k in range(8):
        a(f"v_subrev_u32 v10, {k}, v9")
        a("v_cvt_f32_u32 v10, v10")
        a("v_cvt_pk_bf16_f32 v10, v10, v10")
        a("v_and_b32 v10, 0xffff0000, v10")
        a("v_cvt_u32_f32 v11, v10")
        a("v_bfe_u32 v10, v10, 23, 8")
        a("v_subrev_u32 v10, 134, v10")
        a("v_med3_i32 v10, v10, 0, 3")
        a("v_lshrrev_b32 v12, 7, v11")
        a("v_and_b32 v13, 7, v11")
        a("v_bfe_u32 v11, v11, 3, 4")
        a("v_sub_u32 v14, 3, v10")
        a("v_lshlrev_b32 v12, v14, v12")
        a("v_lshrrev_b32 v13, v10, v13")
        a("v_lshl_add_u32 v12, v10, 3, v12")
        a("v_add_u32 v12, v12, v13")
        a("v_lshl_add_u32 v12, v12, 4, v11")
        a(f"v_lshl_add_u32 v{16+k}, v12, 2, v15")
    a(f"v_and_b32 v{vC}, 15, v{vLane}")
    a(f"v_lshrrev_b32 v{vG}, 4, v{vLane}")
    a(f"v_cmp_le_u32 vcc, 8, v{vC}")
    a(f"v_add_u32 v9, 120, v{vC}")
    a(f"v_cndmask_b32 v44, v{vC}, v9, vcc")
    a("v_cvt_f32_u32 v44, v44")
    a(f"v_lshrrev_b32 v9, 2, v{vC}")
    a("v_lshlrev_b32 v9, 7, v9")
    a(f"v_and_b32 v10, 3, v{vC}")
    a("v_lshl_add_u32 v9, v10, 1, v9")
    a("v_add_u32 v9, 256, v9")
    a(f"v_subrev_u32 v10, 8, v{vC}")
    a("v_lshrrev_b32 v10, 1, v10")
    a("v_lshlrev_b32 v10, 7, v10")
    a(f"v_and_b32 v11, 1, v{vC}")
    a("v_lshl_add_u32 v10, v11, 2, v10")
    a("v_add_u32 v10, 512, v10")
    a("v_cndmask_b32 v45, v9, v10, vcc")
    a("v_cvt_f32_u32 v45, v45")
    a(f"v_lshlrev_b32 v9, 7, v{vC}")
    a("v_add_u32 v9, 1024, v9")
    a("v_min_u32 v9, 2048, v9")
    a("v_cvt_f32_u32 v46, v9")
    a(f"v_lshlrev_b32 v9, 3, v{vC}")
    a("v_cvt_f32_u32 v47, v9")
    a("s_lshl_b32 s22, s96, 9")
    a(f"s_add_u32 s22, s22, {PR}")
    a(f"v_lshl_add_u32 v48, v{vG}, 6, v{vBase}")
    a("v_add_u32 v48, s22, v48")

    a("s_waitcnt vmcnt(8)")
    stamp(a, 1)
    a(f"v_lshlrev_b32 v2, 4, v{vLane}")
    a("s_lshl_b32 s22, s18, 1")
    a("v_add_u32 v2, s22, v2")
    unpack8(a, 120, 112)
    layernorm(a, 120, 128, 136, 66)
    for e in range(8):
        op = "ds_write_b16" if e % 2 == 0 else "ds_write_b16_d16_hi"
        a(f"{op} v2, v{128+e//2} offset:{e*1040}")
    a("v_and_b32 v3, 7, v0")
    a("v_mul_u32_u24 v3, 65, v3")
    a("v_lshrrev_b32 v1, 3, v0")
    a("v_add_lshl_u32 v3, v3, v1, 4")
    a("s_lshl_b32 s22, s2, 13")
    a("v_lshlrev_b32 v1, 4, v0")
    a("v_add_u32 v1, s22, v1")
    a("s_waitcnt lgkmcnt(0)")
    a("s_barrier")
    a("ds_read_b128 v[120:123], v3")

    a("s_waitcnt lgkmcnt(0)")
    a("buffer_store_dwordx4 v[120:123], v1, s[48:51], 0 offen sc1")
    a("s_waitcnt vmcnt(3)")
    for r in (4, 5, 6, 7, 8, vDsk):
        a(f"v_lshlrev_b32 v{r}, 16, v{r}")
    exp_acc(a, 9, 8, 10, 15)
    bf16r(a, 9, 9)
    exp_acc(a, 128, 4, 10, 15)
    bf16r(a, 128, 128)
    a("v_mul_f32 v128, v128, v9")
    a("v_mul_f32 v128, 0xbfb8aa3b, v128")
    a("v_mul_f32 v129, v5, v9")
    a("v_mul_f32 v129, 0.15915494, v129")
    a("v_mul_f32 v130, v6, v9")
    a("v_add_f32 v130, v130, v130")
    a("v_mul_f32 v131, v7, v9")
    a("v_add_f32 v131, v131, v131")
    a(f"v_and_b32 v9, 127, v{vT}")
    a(f"v_lshl_add_u32 v9, v9, 4, v{vBase}")
    a(f"ds_write_b128 v9, v[128:131] offset:{PR}")
    for i in range(12):
        a(f"v_mov_b32 v{96+i}, 0")
    a("s_waitcnt lgkmcnt(0)")
    a("s_barrier")
    stamp(a, 2)

    def kgen(ms):
        out = []
        for nn in range(4):
            pb = 128 + 4 * nn
            ent = [(47, None, 60, 64), (44, 1, 68, 72), (45, 1, 76, 80), (46, 1, 84, 88)]
            ph = [[], [], [], []]
            for n_, (y, isA, oh, ol) in enumerate(ent):
                e = 144 + 8 * n_
                c, o, h = e + 2, e + 4, e + 6
                yp = (y // 2) * 2
                sel = "op_sel_hi:[1,0]" if y % 2 == 0 else "op_sel:[0,1] op_sel_hi:[1,1]"
                ph[0].append(f"v_pk_mul_f32 v[{e}:{e+1}], v[{pb}:{pb+1}], v[{yp}:{yp+1}] {sel}")
                ph[0].append(f"v_fract_f32 v{e+1}, v{e+1}")
                ph[1].append(f"v_exp_f32 v{e}, v{e}")
                ph[1].append(f"v_cos_f32 v{c}, v{e+1}")
                ph[1].append(f"v_sin_f32 v{c+1}, v{e+1}")
                L = ph[3]
                if not isA:
                    L.append(f"v_pk_mul_f32 v[{o}:{o+1}], v[{c}:{c+1}], v[{e}:{e+1}] op_sel_hi:[1,0]")
                else:
                    L.append(f"v_pk_mul_f32 v[{c}:{c+1}], v[{c}:{c+1}], v[{e}:{e+1}] op_sel_hi:[1,0]")
                    L.append(f"v_pk_mul_f32 v[{o}:{o+1}], v[{pb+2}:{pb+3}], v[{c}:{c+1}] op_sel_hi:[1,0]")
                    L.append(f"v_pk_fma_f32 v[{o}:{o+1}], v[{pb+2}:{pb+3}], v[{c}:{c+1}], v[{o}:{o+1}] op_sel:[1,1,0] op_sel_hi:[0,1,1] neg_lo:[1,0,0] neg_hi:[1,0,1]")
                L.append(f"v_cvt_pk_bf16_f32 v{oh+nn}, v{o}, v{o+1}")
                L.append(f"v_lshlrev_b32 v{h}, 16, v{oh+nn}")
                L.append(f"v_and_b32 v{h+1}, 0xffff0000, v{oh+nn}")
                L.append(f"v_pk_add_f32 v[{o}:{o+1}], v[{o}:{o+1}], v[{h}:{h+1}] neg_lo:[0,1] neg_hi:[0,1]")
                L.append(f"v_cvt_pk_bf16_f32 v{ol+nn}, v{o}, v{o+1}")
            ph[2] = ["s_nop 15"]
            out += ph[0] + ph[1] + ph[2] + ph[3]
        return out

    for ms in range(2):
        for nn in range(4):
            a(f"ds_read_b128 v[{128+4*nn}:{131+4*nn}], v48 offset:{256*ms+16*nn}")
        a("s_waitcnt lgkmcnt(0)")
        KG = kgen(ms)
        for ii, ins in enumerate(KG):
            a(ins)
            if ms == 0 and ii == len(KG) // 2:
                a("s_waitcnt vmcnt(0)")
                a("s_barrier")
                a("s_and_b32 s22, s2, 63")
                a("s_lshl_b32 s22, s22, 2")
                a("v_mov_b32 v1, s22")
                a("v_mov_b32 v2, 1")
                a("v_cmp_eq_u32 vcc, 0, v0")
                a("s_and_saveexec_b64 s[36:37], vcc")
                a("s_cbranch_execz KA_ARR")
                a("buffer_atomic_add v2, v1, s[88:91], 0 offen sc1")
                a.label("KA_ARR")
                a("s_mov_b64 exec, s[36:37]")

        for gmm in range(3):
            ac = 96 + 4 * gmm
            Ah, Al = 68 + 8 * gmm, 72 + 8 * gmm
            a(f"v_mfma_f32_16x16x32_bf16 v[{ac}:{ac+3}], v[{Ah}:{Ah+3}], v[60:63], v[{ac}:{ac+3}]")
            a(f"v_mfma_f32_16x16x32_bf16 v[{ac}:{ac+3}], v[{Ah}:{Ah+3}], v[64:67], v[{ac}:{ac+3}]")
            a(f"v_mfma_f32_16x16x32_bf16 v[{ac}:{ac+3}], v[{Al}:{Al+3}], v[60:63], v[{ac}:{ac+3}]")
    a.nop(24)
    stamp(a, 3)
    a("s_mul_i32 s22, s96, 3072")
    a(f"s_add_u32 s22, s22, {SC}")
    a(f"v_lshl_add_u32 v9, v{vG}, 8, v{vBase}")
    a(f"v_lshl_add_u32 v9, v{vC}, 2, v9")
    a("v_add_u32 v9, s22, v9")
    for gmm in range(3):
        for r in range(4):
            a(f"ds_write_b32 v9, v{96+4*gmm+r} offset:{gmm*1024+r*64}")
    def pack_store(sk, lbl):
        a(f"v_add_u32 v9, s{sk+1}, v12")
        a("v_lshrrev_b32 v10, 5, v9")
        a("v_bfe_u32 v15, v9, 2, 1")
        a("v_lshl_add_u32 v10, v10, 1, v15")
        a(f"v_mul_lo_u32 v10, v10, s{sk+4}")
        a(f"s_lshr_b32 s22, s{sk}, 5")
        a("v_add_u32 v10, s22, v10")
        a("v_lshlrev_b32 v10, 10, v10")
        a("v_bfe_u32 v15, v9, 3, 2")
        a("v_and_b32 v124, 3, v9")
        a("v_lshl_add_u32 v15, v15, 2, v124")
        a("v_lshl_add_u32 v15, v13, 4, v15")
        a("v_lshl_add_u32 v10, v15, 4, v10")
        a(f"v_add_u32 v10, s{sk+5}, v10")
        a(f"v_cmp_gt_u32 vcc, s{sk+2}, v9")
        a("s_and_saveexec_b64 s[36:37], vcc")
        a(f"s_cbranch_execz {lbl}")
        a("ds_read2_b32 v[124:125], v14 offset0:0 offset1:1")
        a("ds_read2_b32 v[126:127], v14 offset0:2 offset1:3")
        a("s_waitcnt lgkmcnt(0)")
        a("buffer_store_dwordx4 v[124:127], v10, s[56:59], 0 offen")
        a.label(lbl)
        a("s_mov_b64 exec, s[36:37]")

    a(f"v_lshrrev_b32 v9, 3, v{vT}")
    a(f"v_and_b32 v10, 7, v{vT}")
    a("v_mul_u32_u24 v11, 544, v10")
    a("v_lshl_add_u32 v11, v9, 1, v11")
    a(f"v_add_u32 v11, {SC+12288}, v11")
    a(f"v_add_u32 v11, v11, v{vBase}")
    a(f"v_lshrrev_b32 v12, 2, v{vT}")
    a(f"v_and_b32 v13, 3, v{vT}")
    a("v_mul_u32_u24 v14, 68, v12")
    a("v_lshl_add_u32 v14, v13, 4, v14")
    a(f"v_add_u32 v14, {SC+12288}, v14")
    a(f"v_add_u32 v14, v14, v{vBase}")
    for e in range(8):
        op = "ds_write_b16" if e % 2 == 0 else "ds_write_b16_d16_hi"
        a(f"{op} v11, v{236+e//2} offset:{e*68}")
        a(f"{op} v11, v{240+e//2} offset:{4352+e*68}")
    a("s_waitcnt lgkmcnt(0)")
    a("s_barrier")
    pack_store(24, "KA_PS0")
    a("s_cmp_ge_u32 s20, 184")
    a("s_cbranch_scc1 KA_PS1")
    a("v_add_u32 v14, 4352, v14")
    pack_store(30, "KA_PS1x")
    a.label("KA_PS1")
    a(f"v_lshlrev_b32 v1, 2, v{vLane}")
    a("s_cmp_lg_u32 s18, 0")
    a("s_cbranch_scc1 KA_GO")
    a.label("KA_POLL")
    a("buffer_load_dword v2, v1, s[88:91], 0 offen sc1")
    a("s_waitcnt vmcnt(0)")
    a("v_cmp_ne_u32 vcc, 4, v2")
    a("s_cmp_eq_u64 vcc, 0")
    a("s_cbranch_scc1 KA_GO")
    a("s_sleep 4")
    a("s_branch KA_POLL")
    a.label("KA_GO")
    a("s_barrier")
    a("s_lshl_b32 s22, s20, 4")
    a(f"v_lshl_add_u32 v3, v{vT}, 13, s22")
    a("v_add_u32 v4, 0x2000, v3")
    a("buffer_load_dwordx4 v[32:35], v3, s[48:51], 0 offen sc1")
    a("buffer_load_dword v36, v4, s[48:51], 0 offen sc1")
    a(f"v_lshl_add_u32 v10, v{vT}, 4, v{vBase}")
    for i in range(4):
        a(f"v_mov_b32 v{60+i}, 0")
    a(f"v_cmp_gt_u32 vcc, 30, v{vT}")
    a("s_and_saveexec_b64 s[36:37], vcc")
    a("s_cbranch_execz KA_Z2")
    a(f"ds_write_b128 v10, v[60:63] offset:{KH+4096}")
    a(f"ds_write_b128 v10, v[60:63] offset:{KL+4096}")
    a.label("KA_Z2")
    a("s_mov_b64 exec, s[36:37]")
    a(f"v_lshl_add_u32 v11, v{vT}, 2, v{vBase}")
    a("s_waitcnt lgkmcnt(0)")
    a("s_barrier")
    a(f"v_add_u32 v15, {SC}, v11")
    for j in range(3):
        a(f"ds_read2st64_b32 v[{64+4*j}:{65+4*j}], v15 offset0:{4*j} offset1:{4*j+12}")
        a(f"ds_read2st64_b32 v[{66+4*j}:{67+4*j}], v15 offset0:{4*j+24} offset1:{4*j+36}")
    a("s_waitcnt lgkmcnt(0)")
    for j in range(3):
        a(f"v_add_f32 v{64+4*j}, v{64+4*j}, v{65+4*j}")
        a(f"v_add_f32 v{66+4*j}, v{66+4*j}, v{67+4*j}")
        a(f"v_add_f32 v{64+4*j}, v{64+4*j}, v{66+4*j}")
        a(f"ds_write_b32 v11, v{64+4*j} offset:{KC+1024*j}")
    a(f"v_lshrrev_b32 v9, 1, v{vG}")
    a(f"v_and_b32 v15, 1, v{vG}")
    a(f"v_sub_u32 v12, v9, v{vC}")
    a("v_lshlrev_b32 v12, 5, v12")
    a("v_lshlrev_b32 v13, 4, v15")
    a("v_sub_u32 v12, v12, v13")
    a("s_lshl_b32 s22, s96, 7")
    a(f"s_add_u32 s23, s22, {KH+496}")
    a(f"v_add3_u32 v{vBb}, v12, v{vBase}, s23")
    a(f"v_add_u32 v12, 1, v{vC}")
    a("v_and_b32 v12, 1, v12")
    a("v_lshlrev_b32 v13, 4, v9")
    a(f"v_add_u32 v13, v13, v{vC}")
    a("v_lshlrev_b32 v14, 3, v15")
    a("v_sub_u32 v13, v13, v14")
    a("v_sub_u32 v13, v13, v12")
    a("v_add_u32 v13, 9, v13")
    a("v_lshlrev_b32 v13, 1, v13")
    a("v_mul_u32_u24 v14, 4160, v12")
    a("v_add_u32 v13, v13, v14")
    a(f"v_add3_u32 v{vAb}, v13, v{vBase}, s22")
    for i in range(1, 4):
        a(f"v_add_u32 v{vAb+i}, {1024*i}, v{vAb}")
    a("s_waitcnt lgkmcnt(0)")
    a("s_barrier")
    for k in range(8):
        a(f"ds_read_b32 v{64+k}, v{16+k}")
    a("s_waitcnt lgkmcnt(0)")
    for k in range(4):
        x0, x1 = 64 + 2 * k, 65 + 2 * k
        a(f"v_cvt_pk_bf16_f32 v{96+k}, v{x0}, v{x1}")
        a(f"v_lshlrev_b32 v72, 16, v{96+k}")
        a(f"v_and_b32 v73, 0xffff0000, v{96+k}")
        a(f"v_sub_f32 v{x0}, v{x0}, v72")
        a(f"v_sub_f32 v{x1}, v{x1}, v73")
        a(f"v_cvt_pk_bf16_f32 v{100+k}, v{x0}, v{x1}")
    a(f"ds_write_b128 v10, v[96:99] offset:{KH}")
    a(f"ds_write_b128 v10, v[100:103] offset:{KL}")
    a("s_waitcnt vmcnt(0)")
    a(f"ds_write_b128 v10, v[32:35] offset:{U0+32}")
    for k in range(4):
        a(f"v_alignbit_b32 v{44+k}, v{33+k}, v{32+k}, 16")
    a(f"ds_write_b128 v10, v[44:47] offset:{U1+32}")
    for k in range(3):
        a(f"v_mov_b32 v{52+k}, 0")
    a("v_lshlrev_b32 v55, 16, v32")
    a(f"v_cmp_eq_u32 vcc, 0, v{vT}")
    a("s_and_saveexec_b64 s[36:37], vcc")
    a("s_cbranch_execz KA_Z1")
    a(f"ds_write_b128 v{vBase}, v[60:63] offset:{U0}")
    a(f"ds_write_b128 v{vBase}, v[60:63] offset:{U0+16}")
    a(f"ds_write_b128 v{vBase}, v[60:63] offset:{U1}")
    a(f"ds_write_b128 v{vBase}, v[52:55] offset:{U1+16}")
    a.label("KA_Z1")
    a("s_mov_b64 exec, s[36:37]")
    a("s_waitcnt lgkmcnt(0)")
    a("s_barrier")
    stamp(a, 4)
    if os.environ.get("DBGDUMP"):
        srd(a, 4, 16, 17, 0x800000, 0x2000000)
        a(f"v_add_u32 v64, 64, v{vT}")
        a("v_and_b32 v64, 255, v64")
        a(f"v_lshl_add_u32 v65, v64, 4, v{vBase}")
        a("s_lshl_b32 s22, s20, 14")
        a("v_lshl_add_u32 v64, v64, 4, s22")
        for k_, off_ in enumerate((KH, KL, U0 + 32, U1 + 32)):
            a(f"ds_read_b128 v[68:71], v65 offset:{off_}")
            a("s_waitcnt lgkmcnt(0)")
            a(f"v_add_u32 v66, {4096*k_}, v64")
            a("buffer_store_dwordx4 v[68:71], v66, s[4:7], 0 offen")
            a("s_nop 2")

    def reads(ri):
        sb = 32 + 96 * ri
        aq = []
        for q in range(8):
            ab = sb + 64 + 4 * q
            o = 16 * ri + 128 * (q & 1)
            aq.append([f"ds_read2_b32 v[{ab}:{ab+1}], v{vAb+(q>>1)} offset0:{o} offset1:{o+1}",
                       f"ds_read2_b32 v[{ab+2}:{ab+3}], v{vAb+(q>>1)} offset0:{o+2} offset1:{o+3}"])
        seq = list(aq[0])
        for p in range(7, -1, -1):
            seq.append(f"ds_read_b128 v[{sb+4*p}:{sb+4*p+3}], v{vBb} offset:{512*(7-p)+64*ri}")
            seq.append(f"ds_read_b128 v[{sb+32+4*p}:{sb+32+4*p+3}], v{vBb} offset:{4608+512*(7-p)+64*ri}")
        for q in range(1, 8):
            seq += aq[q]
        return seq

    def mfmas(ri):
        sb = 32 + 96 * ri
        out = []
        for q in range(8):
            ab = sb + 64 + 4 * q
            for t in range(7, q - 1, -1):
                p = t - q
                out.append(f"v_mfma_f32_16x16x32_bf16 v[{4*t}:{4*t+3}], v[{ab}:{ab+3}], v[{sb+4*p}:{sb+4*p+3}], v[{4*t}:{4*t+3}]")
                out.append(f"v_mfma_f32_16x16x32_bf16 v[{4*t}:{4*t+3}], v[{ab}:{ab+3}], v[{sb+32+4*p}:{sb+32+4*p+3}], v[{4*t}:{4*t+3}]")
        return out

    for r_ in reads(0):
        a(r_)
    for i in range(32):
        a(f"v_mov_b32 v{i}, 0")
    for ri in range(2):
        a("s_waitcnt lgkmcnt(0)")
        R = reads(1) if ri == 0 else []
        k = 0
        for i, m in enumerate(mfmas(ri)):
            a(m)
            if i % 2 == 1 and k < len(R):
                a(R[k]); k += 1
        assert k == len(R)
    a.nop(24)
    stamp(a, 5)
    a("s_lshl_b32 s22, s96, 13")
    a(f"s_add_u32 s22, s22, {SC}")
    a(f"v_lshl_add_u32 v40, v{vLane}, 4, v{vBase}")
    a("v_add_u32 v41, s22, v40")
    for t in range(8):
        a(f"ds_write_b128 v41, v[{4*t}:{4*t+3}] offset:{1024*t}")
    a("s_lshl_b32 s22, s96, 11")
    a(f"s_add_u32 s23, s22, {SC}")
    a("v_add_u32 v41, s23, v40")
    a(f"v_lshlrev_b32 v42, 5, v{vC}")
    a(f"v_lshl_add_u32 v42, v{vG}, 3, v42")
    a("s_lshl_b32 s22, s96, 10")
    a("v_add_u32 v42, s22, v42")
    a(f"v_add_u32 v43, v42, v{vBase}")
    a("s_lshl_b32 s22, s20, 12")
    a("v_add_u32 v42, s22, v42")
    a("s_waitcnt lgkmcnt(0)")
    a("s_barrier")
    for src in range(4):
        for k in range(2):
            b = 64 + 8 * src + 4 * k
            a(f"ds_read_b128 v[{b}:{b+3}], v41 offset:{8192*src+1024*k}")
    for k in range(2):
        a(f"ds_read_b64 v[{48+2*k}:{49+2*k}], v43 offset:{U0+32+512*k}")
    a("s_waitcnt lgkmcnt(0)")
    for i in range(8):
        a(f"v_add_f32 v{64+i}, v{64+i}, v{72+i}")
        a(f"v_add_f32 v{80+i}, v{80+i}, v{88+i}")
    for i in range(8):
        a(f"v_add_f32 v{i}, v{64+i}, v{80+i}")
    for k in range(2):
        y = 4 * k
        a(f"v_cvt_pk_bf16_f32 v56, v{y}, v{y+1}")
        a(f"v_cvt_pk_bf16_f32 v57, v{y+2}, v{y+3}")
        a(f"v_lshlrev_b32 v{y}, 16, v56")
        a(f"v_and_b32 v{y+1}, 0xffff0000, v56")
        a(f"v_lshlrev_b32 v{y+2}, 16, v57")
        a(f"v_and_b32 v{y+3}, 0xffff0000, v57")
        a(f"v_lshlrev_b32 v58, 16, v{48+2*k}")
        a(f"v_and_b32 v59, 0xffff0000, v{48+2*k}")
        a(f"v_lshlrev_b32 v60, 16, v{49+2*k}")
        a(f"v_and_b32 v61, 0xffff0000, v{49+2*k}")
        for i in range(4):
            a(f"v_mul_f32 v{58+i}, v{58+i}, v{vDsk}")
        a("v_cvt_pk_bf16_f32 v56, v58, v59")
        a("v_cvt_pk_bf16_f32 v57, v60, v61")
        a("v_lshlrev_b32 v58, 16, v56")
        a("v_and_b32 v59, 0xffff0000, v56")
        a("v_lshlrev_b32 v60, 16, v57")
        a("v_and_b32 v61, 0xffff0000, v57")
        for i in range(4):
            a(f"v_add_f32 v{y+i}, v{y+i}, v{58+i}")
        a(f"v_cvt_pk_bf16_f32 v{62+2*k}, v{y}, v{y+1}")
        a(f"v_cvt_pk_bf16_f32 v{63+2*k}, v{y+2}, v{y+3}")
        a(f"buffer_store_dwordx2 v[{62+2*k}:{63+2*k}], v42, s[52:55], 0 offen offset:{512*k}")
    stamp(a, 6)
    stamp_flush(a, 2, 7, 16, 17)
    a.label("KA_END")
    a("s_endpgm")
    return kernel_desc("ka_kernel", 256), f"; @launch kernel=ka_kernel grid=(256,1,1) block=(512,1,1) lds={2*DSZ}"
```

```python
from gen import *

U0, U1, KH, KL, PR, KC, SC, DSZ = 0, 4160, 8320, 12928, 17536, 19584, 22656, 55424
L2E = "0x3fb8aa3b"
L2E_LO = "0x32a57060"
LN2 = "0x3f317218"


def exp_acc(a, d, x, t1, t2):
    a(f"v_mul_f32 v{t1}, {L2E}, v{x}")
    a(f"v_mov_b32 v{t2}, {L2E}")
    a(f"v_fma_f32 v{t2}, v{x}, v{t2}, -v{t1}")
    a(f"v_fmac_f32 v{t2}, {L2E_LO}, v{x}")
    a(f"v_exp_f32 v{d}, v{t1}")
    a(f"v_mul_f32 v{t2}, {LN2}, v{t2}")
    a(f"v_fmac_f32 v{d}, v{d}, v{t2}")


def gen_a(a):
    kernel_head(a, "ka_kernel")
    a("s_cmp_ge_u32 s2, 256")
    a("s_cbranch_scc1 KA_END")
    a(f"s_load_dwordx4 s[4:7], s[0:1], {KA_LOGA}")
    a(f"s_load_dwordx4 s[8:11], s[0:1], {KA_CRE}")
    a(f"s_load_dwordx4 s[12:15], s[0:1], {KA_LOGDT}")
    a(f"s_load_dwordx4 s[60:63], s[0:1], {KA_DBG}")
    a(f"s_load_dwordx2 s[64:65], s[0:1], {KA_X}")
    a(f"s_load_dwordx2 s[92:93], s[0:1], {KA_W1}")
    a(f"s_load_dwordx2 s[94:95], s[0:1], {KA_W2}")
    vT, vLane, vBb, vAb, vDsk, vBase, vC, vG = 224, 225, 226, 227, 231, 232, 233, 234
    a(f"v_and_b32 v{vT}, 255, v0")
    a(f"v_and_b32 v{vLane}, 63, v0")
    a("v_lshrrev_b32 v1, 6, v0")
    a("v_readfirstlane_b32 s18, v1")
    a("s_lshr_b32 s19, s18, 2")
    a("s_and_b32 s96, s18, 3")
    a("s_lshl_b32 s20, s2, 1")
    a("s_add_u32 s20, s20, s19")
    a(f"s_mul_i32 s21, s19, {DSZ}")
    a(f"v_mov_b32 v{vBase}, s21")
    a("s_waitcnt lgkmcnt(0)")
    a("s_mov_b32 s16, s62")
    a("s_mov_b32 s17, s63")
    srd(a, 84, 64, 65, 0x200000)
    srd(a, 88, 60, 61, 0x100)
    a("s_lshl_b32 s22, s2, 13")
    a("v_lshlrev_b32 v1, 4, v0")
    a("v_add_u32 v1, s22, v1")
    a("buffer_load_dwordx4 v[112:115], v1, s[84:87], 0 offen")
    srd(a, 24, 4, 5, 0x20000)
    srd(a, 28, 6, 7, 0x20000)
    srd(a, 32, 8, 9, 0x20000)
    srd(a, 36, 10, 11, 0x20000)
    srd(a, 40, 12, 13, 0x400)
    srd(a, 44, 14, 15, 0x400)
    srd(a, 48, 16, 17, 0x200000, WS_UT)
    srd(a, 52, 16, 17, 0x200000, WS_AT)
    srd(a, 56, 16, 17, 0x400000, WS_W1T)
    a("s_lshl_b32 s22, s20, 8")
    a(f"v_and_b32 v1, 127, v{vT}")
    a("v_lshl_add_u32 v1, v1, 1, s22")
    a("buffer_load_ushort v4, v1, s[24:27], 0 offen")
    a("buffer_load_ushort v5, v1, s[28:31], 0 offen")
    a("buffer_load_ushort v6, v1, s[32:35], 0 offen")
    a("buffer_load_ushort v7, v1, s[36:39], 0 offen")
    a("s_lshl_b32 s22, s20, 1")
    a("v_mov_b32 v2, s22")
    a("buffer_load_ushort v8, v2, s[40:43], 0 offen")
    a(f"buffer_load_ushort v{vDsk}, v2, s[44:47], 0 offen")

    def pack_setup(rnd, sr, sk):
        a(f"s_add_u32 s22, s20, {512*rnd}")
        a("s_cmp_lt_u32 s22, 352")
        a(f"s_cselect_b32 s{sr}, s92, s94")
        a(f"s_cselect_b32 s{sr+1}, s93, s95")
        a(f"s_mov_b32 s{sk+2}, {D}")
        a(f"s_cselect_b32 s{sk+2}, {F}, s{sk+2}")
        a(f"s_lshl_b32 s{sk+3}, s{sk+2}, 1")
        a("s_cmp_lt_u32 s22, 352")
        a(f"s_cselect_b32 s{sk+4}, 16, 43")
        a(f"s_cselect_b32 s{sk+5}, 0, {WS_W2T-WS_W1T}")
        a(f"s_and_b32 s{sr+1}, s{sr+1}, 0xffff")
        a(f"s_mov_b32 s{sr+2}, {D*F*2}")
        a(f"s_mov_b32 s{sr+3}, 0x20000")
        a("s_and_b32 s23, s22, 15")
        a("s_lshr_b32 s97, s22, 4")
        a("s_sub_u32 s98, s22, 352")
        a("s_lshr_b32 s99, s98, 3")
        a("s_and_b32 s98, s98, 7")
        a(f"s_cselect_b32 s{sk}, s23, s99")
        a("s_cmp_lt_u32 s22, 352")
        a(f"s_cselect_b32 s{sk}, s23, s99")
        a(f"s_cselect_b32 s{sk+1}, s97, s98")
        a(f"s_lshl_b32 s{sk}, s{sk}, 5")
        a(f"s_lshl_b32 s{sk+1}, s{sk+1}, 6")

    pack_setup(0, 4, 24)
    pack_setup(1, 8, 30)
    a(f"v_lshrrev_b32 v9, 3, v{vT}")
    a(f"v_and_b32 v10, 7, v{vT}")
    for rnd, sr, sk, dreg in ((0, 4, 24, 236), (1, 8, 30, 240)):
        a("v_lshlrev_b32 v11, 3, v10")
        a(f"v_add_u32 v11, s{sk+1}, v11")
        a(f"v_add_u32 v12, s{sk}, v9")
        a(f"v_mul_lo_u32 v12, v12, s{sk+3}")
        a("v_lshl_add_u32 v12, v11, 1, v12")
        a(f"v_cmp_gt_u32 vcc, s{sk+2}, v11")
        a("v_mov_b32 v13, 0x7ffffff0")
        a("v_cndmask_b32 v12, v13, v12, vcc")
        if rnd == 1:
            a("s_cmp_ge_u32 s20, 184")
            a(f"s_cselect_b32 s{sr+2}, 0, s{sr+2}")
        a(f"buffer_load_dwordx4 v[{dreg}:{dreg+3}], v12, s[{sr}:{sr+3}], 0 offen")

    a(f"v_lshlrev_b32 v9, 3, v{vT}")
    a("v_sub_u32 v9, 2047, v9")
    a(f"v_add_u32 v15, {KC}, v{vBase}")
    for k in range(8):
        a(f"v_subrev_u32 v10, {k}, v9")
        a("v_cvt_f32_u32 v10, v10")
        a("v_cvt_pk_bf16_f32 v10, v10, v10")
        a("v_and_b32 v10, 0xffff0000, v10")
        a("v_cvt_u32_f32 v11, v10")
        a("v_bfe_u32 v10, v10, 23, 8")
        a("v_subrev_u32 v10, 134, v10")
        a("v_med3_i32 v10, v10, 0, 3")
        a("v_lshrrev_b32 v12, 7, v11")
        a("v_and_b32 v13, 7, v11")
        a("v_bfe_u32 v11, v11, 3, 4")
        a("v_sub_u32 v14, 3, v10")
        a("v_lshlrev_b32 v12, v14, v12")
        a("v_lshrrev_b32 v13, v10, v13")
        a("v_lshl_add_u32 v12, v10, 3, v12")
        a("v_add_u32 v12, v12, v13")
        a("v_lshl_add_u32 v12, v12, 4, v11")
        a(f"v_lshl_add_u32 v{16+k}, v12, 2, v15")
    a(f"v_and_b32 v{vC}, 15, v{vLane}")
    a(f"v_lshrrev_b32 v{vG}, 4, v{vLane}")
    a(f"v_cmp_le_u32 vcc, 8, v{vC}")
    a(f"v_add_u32 v9, 120, v{vC}")
    a(f"v_cndmask_b32 v44, v{vC}, v9, vcc")
    a("v_cvt_f32_u32 v44, v44")
    a(f"v_lshrrev_b32 v9, 2, v{vC}")
    a("v_lshlrev_b32 v9, 7, v9")
    a(f"v_and_b32 v10, 3, v{vC}")
    a("v_lshl_add_u32 v9, v10, 1, v9")
    a("v_add_u32 v9, 256, v9")
    a(f"v_subrev_u32 v10, 8, v{vC}")
    a("v_lshrrev_b32 v10, 1, v10")
    a("v_lshlrev_b32 v10, 7, v10")
    a(f"v_and_b32 v11, 1, v{vC}")
    a("v_lshl_add_u32 v10, v11, 2, v10")
    a("v_add_u32 v10, 512, v10")
    a("v_cndmask_b32 v45, v9, v10, vcc")
    a("v_cvt_f32_u32 v45, v45")
    a(f"v_lshlrev_b32 v9, 7, v{vC}")
    a("v_add_u32 v9, 1024, v9")
    a("v_min_u32 v9, 2048, v9")
    a("v_cvt_f32_u32 v46, v9")
    a(f"v_lshlrev_b32 v9, 3, v{vC}")
    a("v_cvt_f32_u32 v47, v9")
    a("s_lshl_b32 s22, s96, 9")
    a(f"s_add_u32 s22, s22, {PR}")
    a(f"v_lshl_add_u32 v48, v{vG}, 6, v{vBase}")
    a("v_add_u32 v48, s22, v48")

    a("s_waitcnt vmcnt(8)")
    stamp(a, 1)
    a(f"v_lshlrev_b32 v2, 4, v{vLane}")
    a("s_lshl_b32 s22, s18, 1")
    a("v_add_u32 v2, s22, v2")
    unpack8(a, 120, 112)
    layernorm(a, 120, 128, 136, 66)
    for e in range(8):
        op = "ds_write_b16" if e % 2 == 0 else "ds_write_b16_d16_hi"
        a(f"{op} v2, v{128+e//2} offset:{e*1040}")
    a("v_and_b32 v3, 7, v0")
    a("v_mul_u32_u24 v3, 65, v3")
    a("v_lshrrev_b32 v1, 3, v0")
    a("v_add_lshl_u32 v3, v3, v1, 4")
    a("s_lshl_b32 s22, s2, 13")
    a("v_lshlrev_b32 v1, 4, v0")
    a("v_add_u32 v1, s22, v1")
    a("s_waitcnt lgkmcnt(0)")
    a("s_barrier")
    a("ds_read_b128 v[120:123], v3")

    a("s_waitcnt lgkmcnt(0)")
    a("buffer_store_dwordx4 v[120:123], v1, s[48:51], 0 offen sc1")
    a("s_waitcnt vmcnt(3)")
    for r in (4, 5, 6, 7, 8, vDsk):
        a(f"v_lshlrev_b32 v{r}, 16, v{r}")
    exp_acc(a, 9, 8, 10, 15)
    bf16r(a, 9, 9)
    exp_acc(a, 128, 4, 10, 15)
    bf16r(a, 128, 128)
    a("v_mul_f32 v128, v128, v9")
    a("v_mul_f32 v128, 0xbfb8aa3b, v128")
    a("v_mul_f32 v129, v5, v9")
    a("v_mul_f32 v129, 0.15915494, v129")
    a("v_mul_f32 v130, v6, v9")
    a("v_add_f32 v130, v130, v130")
    a("v_mul_f32 v131, v7, v9")
    a("v_add_f32 v131, v131, v131")
    a(f"v_and_b32 v9, 127, v{vT}")
    a(f"v_lshl_add_u32 v9, v9, 4, v{vBase}")
    a(f"ds_write_b128 v9, v[128:131] offset:{PR}")
    for i in range(12):
        a(f"v_mov_b32 v{96+i}, 0")
    a("s_waitcnt lgkmcnt(0)")
    a("s_barrier")
    stamp(a, 2)

    def kgen(ms):
        out = []
        for nn in range(4):
            pb = 128 + 4 * nn
            ent = [(47, None, 60, 64), (44, 1, 68, 72), (45, 1, 76, 80), (46, 1, 84, 88)]
            for n_, (y, isA, oh, ol) in enumerate(ent):
                e = 144 + 8 * n_
                c, o, h = e + 2, e + 4, e + 6
                yp = (y // 2) * 2
                sel = "op_sel_hi:[1,0]" if y % 2 == 0 else "op_sel:[0,1] op_sel_hi:[1,1]"
                out.append(f"v_pk_mul_f32 v[{e}:{e+1}], v[{pb}:{pb+1}], v[{yp}:{yp+1}] {sel}")
                out.append(f"v_exp_f32 v{e}, v{e}")
                out.append(f"v_fract_f32 v{e+1}, v{e+1}")
                out.append(f"v_cos_f32 v{c}, v{e+1}")
                out.append(f"v_sin_f32 v{c+1}, v{e+1}")
                if not isA:
                    out.append(f"v_pk_mul_f32 v[{o}:{o+1}], v[{c}:{c+1}], v[{e}:{e+1}] op_sel_hi:[1,0]")
                else:
                    out.append(f"v_pk_mul_f32 v[{c}:{c+1}], v[{c}:{c+1}], v[{e}:{e+1}] op_sel_hi:[1,0]")
                    out.append(f"v_pk_mul_f32 v[{o}:{o+1}], v[{pb+2}:{pb+3}], v[{c}:{c+1}] op_sel_hi:[1,0]")
                    out.append(f"v_pk_fma_f32 v[{o}:{o+1}], v[{pb+2}:{pb+3}], v[{c}:{c+1}], v[{o}:{o+1}] op_sel:[1,1,0] op_sel_hi:[0,1,1] neg_lo:[1,0,0] neg_hi:[1,0,1]")
                out.append(f"v_cvt_pk_bf16_f32 v{oh+nn}, v{o}, v{o+1}")
                out.append(f"v_lshlrev_b32 v{h}, 16, v{oh+nn}")
                out.append(f"v_and_b32 v{h+1}, 0xffff0000, v{oh+nn}")
                out.append(f"v_pk_add_f32 v[{o}:{o+1}], v[{o}:{o+1}], v[{h}:{h+1}] neg_lo:[0,1] neg_hi:[0,1]")
                out.append(f"v_cvt_pk_bf16_f32 v{ol+nn}, v{o}, v{o+1}")
        return out

    for ms in range(2):
        for nn in range(4):
            a(f"ds_read_b128 v[{128+4*nn}:{131+4*nn}], v48 offset:{256*ms+16*nn}")
        a("s_waitcnt lgkmcnt(0)")
        KG = kgen(ms)
        for ii, ins in enumerate(KG):
            a(ins)
            if ms == 0 and ii == len(KG) // 2:
                a("s_waitcnt vmcnt(0)")
                a("s_barrier")
                a("s_and_b32 s22, s2, 63")
                a("s_lshl_b32 s22, s22, 2")
                a("v_mov_b32 v1, s22")
                a("v_mov_b32 v2, 1")
                a("v_cmp_eq_u32 vcc, 0, v0")
                a("s_and_saveexec_b64 s[36:37], vcc")
                a("s_cbranch_execz KA_ARR")
                a("buffer_atomic_add v2, v1, s[88:91], 0 offen sc1")
                a.label("KA_ARR")
                a("s_mov_b64 exec, s[36:37]")

        for gmm in range(3):
            ac = 96 + 4 * gmm
            Ah, Al = 68 + 8 * gmm, 72 + 8 * gmm
            a(f"v_mfma_f32_16x16x32_bf16 v[{ac}:{ac+3}], v[{Ah}:{Ah+3}], v[60:63], v[{ac}:{ac+3}]")
            a(f"v_mfma_f32_16x16x32_bf16 v[{ac}:{ac+3}], v[{Ah}:{Ah+3}], v[64:67], v[{ac}:{ac+3}]")
            a(f"v_mfma_f32_16x16x32_bf16 v[{ac}:{ac+3}], v[{Al}:{Al+3}], v[60:63], v[{ac}:{ac+3}]")
    a.nop(24)
    stamp(a, 3)
    a("s_mul_i32 s22, s96, 3072")
    a(f"s_add_u32 s22, s22, {SC}")
    a(f"v_lshl_add_u32 v9, v{vG}, 8, v{vBase}")
    a(f"v_lshl_add_u32 v9, v{vC}, 2, v9")
    a("v_add_u32 v9, s22, v9")
    for gmm in range(3):
        for r in range(4):
            a(f"ds_write_b32 v9, v{96+4*gmm+r} offset:{gmm*1024+r*64}")
    def pack_store(sk, lbl):
        a(f"v_add_u32 v9, s{sk+1}, v12")
        a("v_lshrrev_b32 v10, 5, v9")
        a("v_bfe_u32 v15, v9, 2, 1")
        a("v_lshl_add_u32 v10, v10, 1, v15")
        a(f"v_mul_lo_u32 v10, v10, s{sk+4}")
        a(f"s_lshr_b32 s22, s{sk}, 5")
        a("v_add_u32 v10, s22, v10")
        a("v_lshlrev_b32 v10, 10, v10")
        a("v_bfe_u32 v15, v9, 3, 2")
        a("v_and_b32 v124, 3, v9")
        a("v_lshl_add_u32 v15, v15, 2, v124")
        a("v_lshl_add_u32 v15, v13, 4, v15")
        a("v_lshl_add_u32 v10, v15, 4, v10")
        a(f"v_add_u32 v10, s{sk+5}, v10")
        a(f"v_cmp_gt_u32 vcc, s{sk+2}, v9")
        a("s_and_saveexec_b64 s[36:37], vcc")
        a(f"s_cbranch_execz {lbl}")
        a("ds_read2_b32 v[124:125], v14 offset0:0 offset1:1")
        a("ds_read2_b32 v[126:127], v14 offset0:2 offset1:3")
        a("s_waitcnt lgkmcnt(0)")
        a("buffer_store_dwordx4 v[124:127], v10, s[56:59], 0 offen")
        a.label(lbl)
        a("s_mov_b64 exec, s[36:37]")

    a(f"v_lshrrev_b32 v9, 3, v{vT}")
    a(f"v_and_b32 v10, 7, v{vT}")
    a("v_mul_u32_u24 v11, 544, v10")
    a("v_lshl_add_u32 v11, v9, 1, v11")
    a(f"v_add_u32 v11, {SC+12288}, v11")
    a(f"v_add_u32 v11, v11, v{vBase}")
    a(f"v_lshrrev_b32 v12, 2, v{vT}")
    a(f"v_and_b32 v13, 3, v{vT}")
    a("v_mul_u32_u24 v14, 68, v12")
    a("v_lshl_add_u32 v14, v13, 4, v14")
    a(f"v_add_u32 v14, {SC+12288}, v14")
    a(f"v_add_u32 v14, v14, v{vBase}")
    for e in range(8):
        op = "ds_write_b16" if e % 2 == 0 else "ds_write_b16_d16_hi"
        a(f"{op} v11, v{236+e//2} offset:{e*68}")
        a(f"{op} v11, v{240+e//2} offset:{4352+e*68}")
    a("s_waitcnt lgkmcnt(0)")
    a("s_barrier")
    pack_store(24, "KA_PS0")
    a("s_cmp_ge_u32 s20, 184")
    a("s_cbranch_scc1 KA_PS1")
    a("v_add_u32 v14, 4352, v14")
    pack_store(30, "KA_PS1x")
    a.label("KA_PS1")
    a(f"v_lshlrev_b32 v1, 2, v{vLane}")
    a("s_cmp_lg_u32 s18, 0")
    a("s_cbranch_scc1 KA_GO")
    a.label("KA_POLL")
    a("buffer_load_dword v2, v1, s[88:91], 0 offen sc1")
    a("s_waitcnt vmcnt(0)")
    a("v_cmp_ne_u32 vcc, 4, v2")
    a("s_cmp_eq_u64 vcc, 0")
    a("s_cbranch_scc1 KA_GO")
    a("s_sleep 4")
    a("s_branch KA_POLL")
    a.label("KA_GO")
    a("s_barrier")
    a("s_lshl_b32 s22, s20, 4")
    a(f"v_lshl_add_u32 v3, v{vT}, 13, s22")
    a("v_add_u32 v4, 0x2000, v3")
    a("buffer_load_dwordx4 v[32:35], v3, s[48:51], 0 offen sc1")
    a("buffer_load_dword v36, v4, s[48:51], 0 offen sc1")
    a(f"v_lshl_add_u32 v10, v{vT}, 4, v{vBase}")
    for i in range(4):
        a(f"v_mov_b32 v{60+i}, 0")
    a(f"v_cmp_gt_u32 vcc, 30, v{vT}")
    a("s_and_saveexec_b64 s[36:37], vcc")
    a("s_cbranch_execz KA_Z2")
    a(f"ds_write_b128 v10, v[60:63] offset:{KH+4096}")
    a(f"ds_write_b128 v10, v[60:63] offset:{KL+4096}")
    a.label("KA_Z2")
    a("s_mov_b64 exec, s[36:37]")
    a(f"v_lshl_add_u32 v11, v{vT}, 2, v{vBase}")
    a("s_waitcnt lgkmcnt(0)")
    a("s_barrier")
    a(f"v_add_u32 v15, {SC}, v11")
    for j in range(3):
        a(f"ds_read2st64_b32 v[{64+4*j}:{65+4*j}], v15 offset0:{4*j} offset1:{4*j+12}")
        a(f"ds_read2st64_b32 v[{66+4*j}:{67+4*j}], v15 offset0:{4*j+24} offset1:{4*j+36}")
    a("s_waitcnt lgkmcnt(0)")
    for j in range(3):
        a(f"v_add_f32 v{64+4*j}, v{64+4*j}, v{65+4*j}")
        a(f"v_add_f32 v{66+4*j}, v{66+4*j}, v{67+4*j}")
        a(f"v_add_f32 v{64+4*j}, v{64+4*j}, v{66+4*j}")
        a(f"ds_write_b32 v11, v{64+4*j} offset:{KC+1024*j}")
    a(f"v_lshrrev_b32 v9, 1, v{vG}")
    a(f"v_and_b32 v15, 1, v{vG}")
    a(f"v_sub_u32 v12, v9, v{vC}")
    a("v_lshlrev_b32 v12, 5, v12")
    a("v_lshlrev_b32 v13, 4, v15")
    a("v_sub_u32 v12, v12, v13")
    a("s_lshl_b32 s22, s96, 7")
    a(f"s_add_u32 s23, s22, {KH+496}")
    a(f"v_add3_u32 v{vBb}, v12, v{vBase}, s23")
    a(f"v_add_u32 v12, 1, v{vC}")
    a("v_and_b32 v12, 1, v12")
    a("v_lshlrev_b32 v13, 4, v9")
    a(f"v_add_u32 v13, v13, v{vC}")
    a("v_lshlrev_b32 v14, 3, v15")
    a("v_sub_u32 v13, v13, v14")
    a("v_sub_u32 v13, v13, v12")
    a("v_add_u32 v13, 9, v13")
    a("v_lshlrev_b32 v13, 1, v13")
    a("v_mul_u32_u24 v14, 4160, v12")
    a("v_add_u32 v13, v13, v14")
    a(f"v_add3_u32 v{vAb}, v13, v{vBase}, s22")
    for i in range(1, 4):
        a(f"v_add_u32 v{vAb+i}, {1024*i}, v{vAb}")
    a("s_waitcnt lgkmcnt(0)")
    a("s_barrier")
    for k in range(8):
        a(f"ds_read_b32 v{64+k}, v{16+k}")
    a("s_waitcnt lgkmcnt(0)")
    for k in range(4):
        x0, x1 = 64 + 2 * k, 65 + 2 * k
        a(f"v_cvt_pk_bf16_f32 v{96+k}, v{x0}, v{x1}")
        a(f"v_lshlrev_b32 v72, 16, v{96+k}")
        a(f"v_and_b32 v73, 0xffff0000, v{96+k}")
        a(f"v_sub_f32 v{x0}, v{x0}, v72")
        a(f"v_sub_f32 v{x1}, v{x1}, v73")
        a(f"v_cvt_pk_bf16_f32 v{100+k}, v{x0}, v{x1}")
    a(f"ds_write_b128 v10, v[96:99] offset:{KH}")
    a(f"ds_write_b128 v10, v[100:103] offset:{KL}")
    a("s_waitcnt vmcnt(0)")
    a(f"ds_write_b128 v10, v[32:35] offset:{U0+32}")
    for k in range(4):
        a(f"v_alignbit_b32 v{44+k}, v{33+k}, v{32+k}, 16")
    a(f"ds_write_b128 v10, v[44:47] offset:{U1+32}")
    for k in range(3):
        a(f"v_mov_b32 v{52+k}, 0")
    a("v_lshlrev_b32 v55, 16, v32")
    a(f"v_cmp_eq_u32 vcc, 0, v{vT}")
    a("s_and_saveexec_b64 s[36:37], vcc")
    a("s_cbranch_execz KA_Z1")
    a(f"ds_write_b128 v{vBase}, v[60:63] offset:{U0}")
    a(f"ds_write_b128 v{vBase}, v[60:63] offset:{U0+16}")
    a(f"ds_write_b128 v{vBase}, v[60:63] offset:{U1}")
    a(f"ds_write_b128 v{vBase}, v[52:55] offset:{U1+16}")
    a.label("KA_Z1")
    a("s_mov_b64 exec, s[36:37]")
    a("s_waitcnt lgkmcnt(0)")
    a("s_barrier")
    stamp(a, 4)

    def reads(ri):
        sb = 32 + 96 * ri
        aq = []
        for q in range(8):
            ab = sb + 64 + 4 * q
            o = 16 * ri + 128 * (q & 1)
            aq.append([f"ds_read2_b32 v[{ab}:{ab+1}], v{vAb+(q>>1)} offset0:{o} offset1:{o+1}",
                       f"ds_read2_b32 v[{ab+2}:{ab+3}], v{vAb+(q>>1)} offset0:{o+2} offset1:{o+3}"])
        seq = list(aq[0])
        for p in range(7, -1, -1):
            seq.append(f"ds_read_b128 v[{sb+4*p}:{sb+4*p+3}], v{vBb} offset:{512*(7-p)+64*ri}")
            seq.append(f"ds_read_b128 v[{sb+32+4*p}:{sb+32+4*p+3}], v{vBb} offset:{4608+512*(7-p)+64*ri}")
        for q in range(1, 8):
            seq += aq[q]
        return seq

    def mfmas(ri):
        sb = 32 + 96 * ri
        out = []
        for q in range(8):
            ab = sb + 64 + 4 * q
            for t in range(7, q - 1, -1):
                p = t - q
                out.append(f"v_mfma_f32_16x16x32_bf16 v[{4*t}:{4*t+3}], v[{ab}:{ab+3}], v[{sb+4*p}:{sb+4*p+3}], v[{4*t}:{4*t+3}]")
                out.append(f"v_mfma_f32_16x16x32_bf16 v[{4*t}:{4*t+3}], v[{ab}:{ab+3}], v[{sb+32+4*p}:{sb+32+4*p+3}], v[{4*t}:{4*t+3}]")
        return out

    for r_ in reads(0):
        a(r_)
    for i in range(32):
        a(f"v_mov_b32 v{i}, 0")
    for ri in range(2):
        a("s_waitcnt lgkmcnt(0)")
        R = reads(1) if ri == 0 else []
        k = 0
        for i, m in enumerate(mfmas(ri)):
            a(m)
            if i % 2 == 1 and k < len(R):
                a(R[k]); k += 1
        assert k == len(R)
    a.nop(24)
    stamp(a, 5)
    a("s_lshl_b32 s22, s96, 13")
    a(f"s_add_u32 s22, s22, {SC}")
    a(f"v_lshl_add_u32 v40, v{vLane}, 4, v{vBase}")
    a("v_add_u32 v41, s22, v40")
    for t in range(8):
        a(f"ds_write_b128 v41, v[{4*t}:{4*t+3}] offset:{1024*t}")
    a("s_lshl_b32 s22, s96, 11")
    a(f"s_add_u32 s23, s22, {SC}")
    a("v_add_u32 v41, s23, v40")
    a(f"v_lshlrev_b32 v42, 5, v{vC}")
    a(f"v_lshl_add_u32 v42, v{vG}, 3, v42")
    a("s_lshl_b32 s22, s96, 10")
    a("v_add_u32 v42, s22, v42")
    a(f"v_add_u32 v43, v42, v{vBase}")
    a("s_lshl_b32 s22, s20, 12")
    a("v_add_u32 v42, s22, v42")
    a("s_waitcnt lgkmcnt(0)")
    a("s_barrier")
    for src in range(4):
        for k in range(2):
            b = 64 + 8 * src + 4 * k
            a(f"ds_read_b128 v[{b}:{b+3}], v41 offset:{8192*src+1024*k}")
    for k in range(2):
        a(f"ds_read_b64 v[{48+2*k}:{49+2*k}], v43 offset:{U0+32+512*k}")
    a("s_waitcnt lgkmcnt(0)")
    for i in range(8):
        a(f"v_add_f32 v{64+i}, v{64+i}, v{72+i}")
        a(f"v_add_f32 v{80+i}, v{80+i}, v{88+i}")
    for i in range(8):
        a(f"v_add_f32 v{i}, v{64+i}, v{80+i}")
    for k in range(2):
        y = 4 * k
        a(f"v_cvt_pk_bf16_f32 v56, v{y}, v{y+1}")
        a(f"v_cvt_pk_bf16_f32 v57, v{y+2}, v{y+3}")
        a(f"v_lshlrev_b32 v{y}, 16, v56")
        a(f"v_and_b32 v{y+1}, 0xffff0000, v56")
        a(f"v_lshlrev_b32 v{y+2}, 16, v57")
        a(f"v_and_b32 v{y+3}, 0xffff0000, v57")
        a(f"v_lshlrev_b32 v58, 16, v{48+2*k}")
        a(f"v_and_b32 v59, 0xffff0000, v{48+2*k}")
        a(f"v_lshlrev_b32 v60, 16, v{49+2*k}")
        a(f"v_and_b32 v61, 0xffff0000, v{49+2*k}")
        for i in range(4):
            a(f"v_mul_f32 v{58+i}, v{58+i}, v{vDsk}")
        a("v_cvt_pk_bf16_f32 v56, v58, v59")
        a("v_cvt_pk_bf16_f32 v57, v60, v61")
        a("v_lshlrev_b32 v58, 16, v56")
        a("v_and_b32 v59, 0xffff0000, v56")
        a("v_lshlrev_b32 v60, 16, v57")
        a("v_and_b32 v61, 0xffff0000, v57")
        for i in range(4):
            a(f"v_add_f32 v{y+i}, v{y+i}, v{58+i}")
        a(f"v_cvt_pk_bf16_f32 v{62+2*k}, v{y}, v{y+1}")
        a(f"v_cvt_pk_bf16_f32 v{63+2*k}, v{y+2}, v{y+3}")
        a(f"buffer_store_dwordx2 v[{62+2*k}:{63+2*k}], v42, s[52:55], 0 offen offset:{512*k}")
    stamp(a, 6)
    stamp_flush(a, 2, 7, 16, 17)
    a.label("KA_END")
    a("s_endpgm")
    return kernel_desc("ka_kernel", 256), f"; @launch kernel=ka_kernel grid=(256,1,1) block=(512,1,1) lds={2*DSZ}"
```

```python
from gen import *

U0, U1, KH, KL, PR, KC, SC, PKS, DSZ = 0, 4160, 8320, 12928, 17536, 19584, 22656, 55424, 64128
L2E = "0x3fb8aa3b"
L2E_LO = "0x32a57060"
LN2 = "0x3f317218"


def exp_acc(a, d, x, t1, t2):
    a(f"v_mul_f32 v{t1}, {L2E}, v{x}")
    a(f"v_mov_b32 v{t2}, {L2E}")
    a(f"v_fma_f32 v{t2}, v{x}, v{t2}, -v{t1}")
    a(f"v_fmac_f32 v{t2}, {L2E_LO}, v{x}")
    a(f"v_exp_f32 v{d}, v{t1}")
    a(f"v_mul_f32 v{t2}, {LN2}, v{t2}")
    a(f"v_fmac_f32 v{d}, v{d}, v{t2}")


def gen_a(a):
    kernel_head(a, "ka_kernel")
    a("s_cmp_ge_u32 s2, 256")
    a("s_cbranch_scc1 KA_END")
    a(f"s_load_dwordx4 s[4:7], s[0:1], {KA_LOGA}")
    a(f"s_load_dwordx4 s[8:11], s[0:1], {KA_CRE}")
    a(f"s_load_dwordx4 s[12:15], s[0:1], {KA_LOGDT}")
    a(f"s_load_dwordx4 s[60:63], s[0:1], {KA_DBG}")
    a(f"s_load_dwordx2 s[64:65], s[0:1], {KA_X}")
    a(f"s_load_dwordx2 s[92:93], s[0:1], {KA_W1}")
    a(f"s_load_dwordx2 s[94:95], s[0:1], {KA_W2}")
    vT, vLane, vBb, vAb, vDsk, vBase, vC, vG = 224, 225, 226, 227, 231, 232, 233, 234
    a(f"v_and_b32 v{vT}, 255, v0")
    a(f"v_and_b32 v{vLane}, 63, v0")
    a("v_lshrrev_b32 v1, 6, v0")
    a("v_readfirstlane_b32 s18, v1")
    a("s_lshr_b32 s19, s18, 2")
    a("s_and_b32 s96, s18, 3")
    a("s_lshl_b32 s20, s2, 1")
    a("s_add_u32 s20, s20, s19")
    a(f"s_mul_i32 s21, s19, {DSZ}")
    a(f"v_mov_b32 v{vBase}, s21")
    a("s_waitcnt lgkmcnt(0)")
    a("s_mov_b32 s16, s62")
    a("s_mov_b32 s17, s63")
    srd(a, 84, 64, 65, 0x200000)
    srd(a, 88, 60, 61, 0x100)
    a("s_lshl_b32 s22, s2, 13")
    a("v_lshlrev_b32 v1, 4, v0")
    a("v_add_u32 v1, s22, v1")
    a("buffer_load_dwordx4 v[112:115], v1, s[84:87], 0 offen")
    srd(a, 24, 4, 5, 0x20000)
    srd(a, 28, 6, 7, 0x20000)
    srd(a, 32, 8, 9, 0x20000)
    srd(a, 36, 10, 11, 0x20000)
    srd(a, 40, 12, 13, 0x400)
    srd(a, 44, 14, 15, 0x400)
    srd(a, 48, 16, 17, 0x200000, WS_UT)
    srd(a, 52, 16, 17, 0x200000, WS_AT)
    srd(a, 56, 16, 17, 0x400000, WS_W1T)
    a("s_lshl_b32 s22, s20, 8")
    a(f"v_and_b32 v1, 127, v{vT}")
    a("v_lshl_add_u32 v1, v1, 1, s22")
    a("buffer_load_ushort v4, v1, s[24:27], 0 offen")
    a("buffer_load_ushort v5, v1, s[28:31], 0 offen")
    a("buffer_load_ushort v6, v1, s[32:35], 0 offen")
    a("buffer_load_ushort v7, v1, s[36:39], 0 offen")
    a("s_lshl_b32 s22, s20, 1")
    a("v_mov_b32 v2, s22")
    a("buffer_load_ushort v8, v2, s[40:43], 0 offen")
    a(f"buffer_load_ushort v{vDsk}, v2, s[44:47], 0 offen")

    def pack_setup(rnd, sr, sk):
        a(f"s_add_u32 s22, s20, {512*rnd}")
        a("s_cmp_lt_u32 s22, 352")
        a(f"s_cselect_b32 s{sr}, s92, s94")
        a(f"s_cselect_b32 s{sr+1}, s93, s95")
        a(f"s_mov_b32 s{sk+2}, {D}")
        a(f"s_cselect_b32 s{sk+2}, {F}, s{sk+2}")
        a(f"s_lshl_b32 s{sk+3}, s{sk+2}, 1")
        a("s_cmp_lt_u32 s22, 352")
        a(f"s_cselect_b32 s{sk+4}, 16, 43")
        a(f"s_cselect_b32 s{sk+5}, 0, {WS_W2T-WS_W1T}")
        a(f"s_and_b32 s{sr+1}, s{sr+1}, 0xffff")
        a(f"s_mov_b32 s{sr+2}, {D*F*2}")
        a(f"s_mov_b32 s{sr+3}, 0x20000")
        a("s_and_b32 s23, s22, 15")
        a("s_lshr_b32 s97, s22, 4")
        a("s_sub_u32 s98, s22, 352")
        a("s_lshr_b32 s99, s98, 3")
        a("s_and_b32 s98, s98, 7")
        a(f"s_cselect_b32 s{sk}, s23, s99")
        a("s_cmp_lt_u32 s22, 352")
        a(f"s_cselect_b32 s{sk}, s23, s99")
        a(f"s_cselect_b32 s{sk+1}, s97, s98")
        a(f"s_lshl_b32 s{sk}, s{sk}, 5")
        a(f"s_lshl_b32 s{sk+1}, s{sk+1}, 6")

    pack_setup(0, 4, 24)
    pack_setup(1, 8, 30)
    a(f"v_lshrrev_b32 v9, 3, v{vT}")
    a(f"v_and_b32 v10, 7, v{vT}")
    for rnd, sr, sk, dreg in ((0, 4, 24, 236), (1, 8, 30, 240)):
        a("v_lshlrev_b32 v11, 3, v10")
        a(f"v_add_u32 v11, s{sk+1}, v11")
        a(f"v_add_u32 v12, s{sk}, v9")
        a(f"v_mul_lo_u32 v12, v12, s{sk+3}")
        a("v_lshl_add_u32 v12, v11, 1, v12")
        a(f"v_cmp_gt_u32 vcc, s{sk+2}, v11")
        a("v_mov_b32 v13, 0x7ffffff0")
        a("v_cndmask_b32 v12, v13, v12, vcc")
        if rnd == 1:
            a("s_cmp_ge_u32 s20, 184")
            a(f"s_cselect_b32 s{sr+2}, 0, s{sr+2}")
        a(f"buffer_load_dwordx4 v[{dreg}:{dreg+3}], v12, s[{sr}:{sr+3}], 0 offen")

    a(f"v_lshlrev_b32 v9, 3, v{vT}")
    a("v_sub_u32 v9, 2047, v9")
    a(f"v_add_u32 v15, {KC}, v{vBase}")
    for k in range(8):
        a(f"v_subrev_u32 v10, {k}, v9")
        a("v_cvt_f32_u32 v10, v10")
        a("v_cvt_pk_bf16_f32 v10, v10, v10")
        a("v_and_b32 v10, 0xffff0000, v10")
        a("v_cvt_u32_f32 v11, v10")
        a("v_bfe_u32 v10, v10, 23, 8")
        a("v_subrev_u32 v10, 134, v10")
        a("v_med3_i32 v10, v10, 0, 3")
        a("v_lshrrev_b32 v12, 7, v11")
        a("v_and_b32 v13, 7, v11")
        a("v_bfe_u32 v11, v11, 3, 4")
        a("v_sub_u32 v14, 3, v10")
        a("v_lshlrev_b32 v12, v14, v12")
        a("v_lshrrev_b32 v13, v10, v13")
        a("v_lshl_add_u32 v12, v10, 3, v12")
        a("v_add_u32 v12, v12, v13")
        a("v_lshl_add_u32 v12, v12, 4, v11")
        a(f"v_lshl_add_u32 v{16+k}, v12, 2, v15")
    a(f"v_and_b32 v{vC}, 15, v{vLane}")
    a(f"v_lshrrev_b32 v{vG}, 4, v{vLane}")
    a(f"v_cmp_le_u32 vcc, 8, v{vC}")
    a(f"v_add_u32 v9, 120, v{vC}")
    a(f"v_cndmask_b32 v44, v{vC}, v9, vcc")
    a("v_cvt_f32_u32 v44, v44")
    a(f"v_lshrrev_b32 v9, 2, v{vC}")
    a("v_lshlrev_b32 v9, 7, v9")
    a(f"v_and_b32 v10, 3, v{vC}")
    a("v_lshl_add_u32 v9, v10, 1, v9")
    a("v_add_u32 v9, 256, v9")
    a(f"v_subrev_u32 v10, 8, v{vC}")
    a("v_lshrrev_b32 v10, 1, v10")
    a("v_lshlrev_b32 v10, 7, v10")
    a(f"v_and_b32 v11, 1, v{vC}")
    a("v_lshl_add_u32 v10, v11, 2, v10")
    a("v_add_u32 v10, 512, v10")
    a("v_cndmask_b32 v45, v9, v10, vcc")
    a("v_cvt_f32_u32 v45, v45")
    a(f"v_lshlrev_b32 v9, 7, v{vC}")
    a("v_add_u32 v9, 1024, v9")
    a("v_min_u32 v9, 2048, v9")
    a("v_cvt_f32_u32 v46, v9")
    a(f"v_lshlrev_b32 v9, 3, v{vC}")
    a("v_cvt_f32_u32 v47, v9")
    a("s_lshl_b32 s22, s96, 9")
    a(f"s_add_u32 s22, s22, {PR}")
    a(f"v_lshl_add_u32 v48, v{vG}, 6, v{vBase}")
    a("v_add_u32 v48, s22, v48")

    a("s_waitcnt vmcnt(8)")
    stamp(a, 1)
    a(f"v_lshlrev_b32 v2, 4, v{vLane}")
    a("s_lshl_b32 s22, s18, 1")
    a("v_add_u32 v2, s22, v2")
    unpack8(a, 120, 112)
    layernorm(a, 120, 128, 136, 66)
    for e in range(8):
        op = "ds_write_b16" if e % 2 == 0 else "ds_write_b16_d16_hi"
        a(f"{op} v2, v{128+e//2} offset:{e*1040}")
    a("v_and_b32 v3, 7, v0")
    a("v_mul_u32_u24 v3, 65, v3")
    a("v_lshrrev_b32 v1, 3, v0")
    a("v_add_lshl_u32 v3, v3, v1, 4")
    a("s_lshl_b32 s22, s2, 13")
    a("v_lshlrev_b32 v1, 4, v0")
    a("v_add_u32 v1, s22, v1")
    a("s_waitcnt lgkmcnt(0)")
    a("s_barrier")
    a("ds_read_b128 v[120:123], v3")

    a("s_waitcnt lgkmcnt(0)")
    a("buffer_store_dwordx4 v[120:123], v1, s[48:51], 0 offen sc1")
    a("s_waitcnt vmcnt(3)")
    for r in (4, 5, 6, 7, 8, vDsk):
        a(f"v_lshlrev_b32 v{r}, 16, v{r}")
    exp_acc(a, 9, 8, 10, 15)
    bf16r(a, 9, 9)
    exp_acc(a, 128, 4, 10, 15)
    bf16r(a, 128, 128)
    a("v_mul_f32 v128, v128, v9")
    a("v_mul_f32 v128, 0xbfb8aa3b, v128")
    a("v_mul_f32 v129, v5, v9")
    a("v_mul_f32 v129, 0.15915494, v129")
    a("v_mul_f32 v130, v6, v9")
    a("v_add_f32 v130, v130, v130")
    a("v_mul_f32 v131, v7, v9")
    a("v_add_f32 v131, v131, v131")
    a(f"v_and_b32 v9, 127, v{vT}")
    a(f"v_lshl_add_u32 v9, v9, 4, v{vBase}")
    a(f"ds_write_b128 v9, v[128:131] offset:{PR}")
    for i in range(12):
        a(f"v_mov_b32 v{96+i}, 0")
    a("s_waitcnt lgkmcnt(0)")
    a("s_barrier")
    stamp(a, 2)

    def kgen(ms):
        P0, P1, P3 = [], [], []
        for nn in range(4):
            pb = 128 + 4 * nn
            ent = [(47, None, 60, 64), (44, 1, 68, 72), (45, 1, 76, 80), (46, 1, 84, 88)]
            p0, p1, L = [], [], []
            for n_, (y, isA, oh, ol) in enumerate(ent):
                e = 144 + 32 * (nn & 1) + 8 * n_
                c, o, h = e + 2, e + 4, e + 6
                yp = (y // 2) * 2
                sel = "op_sel_hi:[1,0]" if y % 2 == 0 else "op_sel:[0,1] op_sel_hi:[1,1]"
                p0.append(f"v_pk_mul_f32 v[{e}:{e+1}], v[{pb}:{pb+1}], v[{yp}:{yp+1}] {sel}")
                p0.append(f"v_fract_f32 v{e+1}, v{e+1}")
                p1.append(f"v_exp_f32 v{e}, v{e}")
                p1.append(f"v_cos_f32 v{c}, v{e+1}")
                p1.append(f"v_sin_f32 v{c+1}, v{e+1}")
                if not isA:
                    L.append(f"v_pk_mul_f32 v[{o}:{o+1}], v[{c}:{c+1}], v[{e}:{e+1}] op_sel_hi:[1,0]")
                else:
                    L.append(f"v_pk_mul_f32 v[{c}:{c+1}], v[{c}:{c+1}], v[{e}:{e+1}] op_sel_hi:[1,0]")
                    L.append(f"v_pk_mul_f32 v[{o}:{o+1}], v[{pb+2}:{pb+3}], v[{c}:{c+1}] op_sel_hi:[1,0]")
                    L.append(f"v_pk_fma_f32 v[{o}:{o+1}], v[{pb+2}:{pb+3}], v[{c}:{c+1}], v[{o}:{o+1}] op_sel:[1,1,0] op_sel_hi:[0,1,1] neg_lo:[1,0,0] neg_hi:[1,0,1]")
                L.append(f"v_cvt_pk_bf16_f32 v{oh+nn}, v{o}, v{o+1}")
                L.append(f"v_lshlrev_b32 v{h}, 16, v{oh+nn}")
                L.append(f"v_and_b32 v{h+1}, 0xffff0000, v{oh+nn}")
                L.append(f"v_pk_add_f32 v[{o}:{o+1}], v[{o}:{o+1}], v[{h}:{h+1}] neg_lo:[0,1] neg_hi:[0,1]")
                L.append(f"v_cvt_pk_bf16_f32 v{ol+nn}, v{o}, v{o+1}")
            P0.append(p0); P1.append(p1); P3.append(L)
        out = P0[0] + P1[0]
        for nn in range(1, 4):
            out += P0[nn] + P1[nn] + P3[nn - 1]
        out += ["s_nop 15", "s_nop 7"] + P3[3]
        return out

    for ms in range(2):
        for nn in range(4):
            a(f"ds_read_b128 v[{128+4*nn}:{131+4*nn}], v48 offset:{256*ms+16*nn}")
        a("s_waitcnt lgkmcnt(0)")
        KG = kgen(ms)
        for ii, ins in enumerate(KG):
            a(ins)
            if ms == 0 and ii == len(KG) // 2:
                a("s_waitcnt vmcnt(0)")
                a("s_barrier")
                a("s_and_b32 s22, s2, 63")
                a("s_lshl_b32 s22, s22, 2")
                a("v_mov_b32 v1, s22")
                a("v_mov_b32 v2, 1")
                a("v_cmp_eq_u32 vcc, 0, v0")
                a("s_and_saveexec_b64 s[36:37], vcc")
                a("s_cbranch_execz KA_ARR")
                a("buffer_atomic_add v2, v1, s[88:91], 0 offen sc1")
                a.label("KA_ARR")
                a("s_mov_b64 exec, s[36:37]")

        for gmm in range(3):
            ac = 96 + 4 * gmm
            Ah, Al = 68 + 8 * gmm, 72 + 8 * gmm
            a(f"v_mfma_f32_16x16x32_bf16 v[{ac}:{ac+3}], v[{Ah}:{Ah+3}], v[60:63], v[{ac}:{ac+3}]")
            a(f"v_mfma_f32_16x16x32_bf16 v[{ac}:{ac+3}], v[{Ah}:{Ah+3}], v[64:67], v[{ac}:{ac+3}]")
            a(f"v_mfma_f32_16x16x32_bf16 v[{ac}:{ac+3}], v[{Al}:{Al+3}], v[60:63], v[{ac}:{ac+3}]")
        if ms == 0:
            a.nop(32)
    a.nop(32)
    stamp(a, 3)
    a("s_mul_i32 s22, s96, 3072")
    a(f"s_add_u32 s22, s22, {SC}")
    a(f"v_lshl_add_u32 v9, v{vG}, 8, v{vBase}")
    a(f"v_lshl_add_u32 v9, v{vC}, 2, v9")
    a("v_add_u32 v9, s22, v9")
    for gmm in range(3):
        for r in range(4):
            a(f"ds_write_b32 v9, v{96+4*gmm+r} offset:{gmm*1024+r*64}")
    a(f"v_lshlrev_b32 v1, 2, v{vLane}")
    a("s_cmp_lg_u32 s18, 0")
    a("s_cbranch_scc1 KA_GO")
    a.label("KA_POLL")
    a("buffer_load_dword v2, v1, s[88:91], 0 offen sc1")
    a("s_waitcnt vmcnt(0)")
    a("v_cmp_ne_u32 vcc, 4, v2")
    a("s_cmp_eq_u64 vcc, 0")
    a("s_cbranch_scc1 KA_GO")
    a("s_sleep 4")
    a("s_branch KA_POLL")
    a.label("KA_GO")
    a("s_barrier")
    a("s_lshl_b32 s22, s20, 4")
    a(f"v_lshl_add_u32 v3, v{vT}, 13, s22")
    a("v_add_u32 v4, 0x2000, v3")
    a("buffer_load_dwordx4 v[32:35], v3, s[48:51], 0 offen sc1")
    a("buffer_load_dword v36, v4, s[48:51], 0 offen sc1")
    a(f"v_lshl_add_u32 v10, v{vT}, 4, v{vBase}")
    for i in range(4):
        a(f"v_mov_b32 v{60+i}, 0")
    a(f"v_cmp_gt_u32 vcc, 30, v{vT}")
    a("s_and_saveexec_b64 s[36:37], vcc")
    a("s_cbranch_execz KA_Z2")
    a(f"ds_write_b128 v10, v[60:63] offset:{KH+4096}")
    a(f"ds_write_b128 v10, v[60:63] offset:{KL+4096}")
    a.label("KA_Z2")
    a("s_mov_b64 exec, s[36:37]")
    a(f"v_lshl_add_u32 v11, v{vT}, 2, v{vBase}")
    a("s_waitcnt lgkmcnt(0)")
    a("s_barrier")
    a(f"v_add_u32 v15, {SC}, v11")
    for j in range(3):
        a(f"ds_read2st64_b32 v[{64+4*j}:{65+4*j}], v15 offset0:{4*j} offset1:{4*j+12}")
        a(f"ds_read2st64_b32 v[{66+4*j}:{67+4*j}], v15 offset0:{4*j+24} offset1:{4*j+36}")
    a("s_waitcnt lgkmcnt(0)")
    for j in range(3):
        a(f"v_add_f32 v{64+4*j}, v{64+4*j}, v{65+4*j}")
        a(f"v_add_f32 v{66+4*j}, v{66+4*j}, v{67+4*j}")
        a(f"v_add_f32 v{64+4*j}, v{64+4*j}, v{66+4*j}")
        a(f"ds_write_b32 v11, v{64+4*j} offset:{KC+1024*j}")
    a(f"v_lshrrev_b32 v9, 1, v{vG}")
    a(f"v_and_b32 v15, 1, v{vG}")
    a(f"v_sub_u32 v12, v9, v{vC}")
    a("v_lshlrev_b32 v12, 5, v12")
    a("v_lshlrev_b32 v13, 4, v15")
    a("v_sub_u32 v12, v12, v13")
    a("s_lshl_b32 s22, s96, 7")
    a(f"s_add_u32 s23, s22, {KH+496}")
    a(f"v_add3_u32 v{vBb}, v12, v{vBase}, s23")
    a(f"v_add_u32 v12, 1, v{vC}")
    a("v_and_b32 v12, 1, v12")
    a("v_lshlrev_b32 v13, 4, v9")
    a(f"v_add_u32 v13, v13, v{vC}")
    a("v_lshlrev_b32 v14, 3, v15")
    a("v_sub_u32 v13, v13, v14")
    a("v_sub_u32 v13, v13, v12")
    a("v_add_u32 v13, 9, v13")
    a("v_lshlrev_b32 v13, 1, v13")
    a("v_mul_u32_u24 v14, 4160, v12")
    a("v_add_u32 v13, v13, v14")
    a(f"v_add3_u32 v{vAb}, v13, v{vBase}, s22")
    for i in range(1, 4):
        a(f"v_add_u32 v{vAb+i}, {1024*i}, v{vAb}")
    a("s_waitcnt lgkmcnt(0)")
    a("s_barrier")
    for k in range(8):
        a(f"ds_read_b32 v{64+k}, v{16+k}")
    a("s_waitcnt lgkmcnt(0)")
    for k in range(4):
        x0, x1 = 64 + 2 * k, 65 + 2 * k
        a(f"v_cvt_pk_bf16_f32 v{96+k}, v{x0}, v{x1}")
        a(f"v_lshlrev_b32 v72, 16, v{96+k}")
        a(f"v_and_b32 v73, 0xffff0000, v{96+k}")
        a(f"v_sub_f32 v{x0}, v{x0}, v72")
        a(f"v_sub_f32 v{x1}, v{x1}, v73")
        a(f"v_cvt_pk_bf16_f32 v{100+k}, v{x0}, v{x1}")
    a(f"ds_write_b128 v10, v[96:99] offset:{KH}")
    a(f"ds_write_b128 v10, v[100:103] offset:{KL}")
    a("s_waitcnt vmcnt(0)")
    a(f"ds_write_b128 v10, v[32:35] offset:{U0+32}")
    for k in range(4):
        a(f"v_alignbit_b32 v{44+k}, v{33+k}, v{32+k}, 16")
    a(f"ds_write_b128 v10, v[44:47] offset:{U1+32}")
    for k in range(3):
        a(f"v_mov_b32 v{52+k}, 0")
    a("v_lshlrev_b32 v55, 16, v32")
    a(f"v_cmp_eq_u32 vcc, 0, v{vT}")
    a("s_and_saveexec_b64 s[36:37], vcc")
    a("s_cbranch_execz KA_Z1")
    a(f"ds_write_b128 v{vBase}, v[60:63] offset:{U0}")
    a(f"ds_write_b128 v{vBase}, v[60:63] offset:{U0+16}")
    a(f"ds_write_b128 v{vBase}, v[60:63] offset:{U1}")
    a(f"ds_write_b128 v{vBase}, v[52:55] offset:{U1+16}")
    a.label("KA_Z1")
    a("s_mov_b64 exec, s[36:37]")
    a("s_waitcnt lgkmcnt(0)")
    a("s_barrier")
    stamp(a, 4)

    def reads(ri):
        sb = 32 + 96 * ri
        aq = []
        for q in range(8):
            ab = sb + 64 + 4 * q
            o = 16 * ri + 128 * (q & 1)
            aq.append([f"ds_read2_b32 v[{ab}:{ab+1}], v{vAb+(q>>1)} offset0:{o} offset1:{o+1}",
                       f"ds_read2_b32 v[{ab+2}:{ab+3}], v{vAb+(q>>1)} offset0:{o+2} offset1:{o+3}"])
        seq = list(aq[0])
        for p in range(7, -1, -1):
            seq.append(f"ds_read_b128 v[{sb+4*p}:{sb+4*p+3}], v{vBb} offset:{512*(7-p)+64*ri}")
            seq.append(f"ds_read_b128 v[{sb+32+4*p}:{sb+32+4*p+3}], v{vBb} offset:{4608+512*(7-p)+64*ri}")
        for q in range(1, 8):
            seq += aq[q]
        return seq

    def mfmas(ri):
        sb = 32 + 96 * ri
        out = []
        for q in range(8):
            ab = sb + 64 + 4 * q
            for t in range(7, q - 1, -1):
                p = t - q
                out.append(f"v_mfma_f32_16x16x32_bf16 v[{4*t}:{4*t+3}], v[{ab}:{ab+3}], v[{sb+4*p}:{sb+4*p+3}], v[{4*t}:{4*t+3}]")
                out.append(f"v_mfma_f32_16x16x32_bf16 v[{4*t}:{4*t+3}], v[{ab}:{ab+3}], v[{sb+32+4*p}:{sb+32+4*p+3}], v[{4*t}:{4*t+3}]")
        return out

    PK1 = [f"v_lshrrev_b32 v248, 3, v{vT}", f"v_and_b32 v249, 7, v{vT}", "v_mul_u32_u24 v244, 544, v249",
           "v_lshl_add_u32 v244, v248, 1, v244", f"v_add_u32 v244, {PKS}, v244", f"v_add_u32 v244, v244, v{vBase}",
           f"v_lshrrev_b32 v246, 2, v{vT}", f"v_and_b32 v247, 3, v{vT}", "v_mul_u32_u24 v245, 68, v246",
           "v_lshl_add_u32 v245, v247, 4, v245", f"v_add_u32 v245, {PKS}, v245", f"v_add_u32 v245, v245, v{vBase}"]
    for e in range(8):
        op = "ds_write_b16" if e % 2 == 0 else "ds_write_b16_d16_hi"
        PK1.append(f"{op} v244, v{236+e//2} offset:{e*68}")
        PK1.append(f"{op} v244, v{240+e//2} offset:{4352+e*68}")

    def pack_store(sk, off4):
        return [f"ds_read2_b32 v[252:253], v245 offset0:{off4} offset1:{off4+1}" if off4 + 3 < 256 else None,
                f"v_add_u32 v248, s{sk+1}, v246", "v_lshrrev_b32 v249, 5, v248", "v_bfe_u32 v250, v248, 2, 1",
                "v_lshl_add_u32 v249, v249, 1, v250", f"v_mul_lo_u32 v249, v249, s{sk+4}", f"s_lshr_b32 s22, s{sk}, 5",
                "v_add_u32 v249, s22, v249", "v_lshlrev_b32 v249, 10, v249", "v_bfe_u32 v250, v248, 3, 2",
                "v_and_b32 v251, 3, v248", "v_lshl_add_u32 v250, v250, 2, v251", "v_lshl_add_u32 v250, v247, 4, v250",
                "v_lshl_add_u32 v249, v250, 4, v249", f"v_add_u32 v249, s{sk+5}, v249", f"v_cmp_gt_u32 vcc, s{sk+2}, v248",
                "v_mov_b32 v250, 0x7ffffff0", "v_cndmask_b32 v249, v250, v249, vcc"]
    PK2 = []
    for rnd, sk in ((0, 24), (1, 30)):
        lst = pack_store(sk, 0)[1:]
        PK2 += lst
        if rnd == 1:
            PK2 += ["v_add_u32 v245, 4352, v245", "s_cmp_ge_u32 s20, 184", "s_cselect_b32 s38, 0, s58"]
        else:
            PK2 += ["s_mov_b32 s38, s58"]
        PK2 += ["ds_read2_b32 v[252:253], v245 offset0:0 offset1:1", "ds_read2_b32 v[254:255], v245 offset0:2 offset1:3",
                "s_waitcnt lgkmcnt(0)", "s_mov_b32 s36, s56", "s_mov_b32 s37, s57", "s_mov_b32 s39, s59",
                "buffer_store_dwordx4 v[252:255], v249, s[36:39], 0 offen", "s_nop 1"]
    for r_ in reads(0):
        a(r_)
    for i in range(32):
        a(f"v_mov_b32 v{i}, 0")
    for ri in range(2):
        a("s_waitcnt lgkmcnt(0)")
        R = reads(1) if ri == 0 else []
        k = 0
        for i, m in enumerate(mfmas(ri)):
            a(m)
            if i % 2 == 1 and k < len(R):
                a(R[k]); k += 1
            PK = PK1 if ri == 0 else PK2
            if i >= 4 and (ri == 1 or i % 2 == 0) and PK:
                a(PK.pop(0))
        assert k == len(R)
        if ri == 0:
            while PK1:
                a(PK1.pop(0))
            a("s_waitcnt lgkmcnt(0)")
            a("s_barrier")
    assert not PK2
    a.nop(32)
    stamp(a, 5)
    a("s_lshl_b32 s22, s96, 13")
    a(f"s_add_u32 s22, s22, {SC}")
    a(f"v_lshl_add_u32 v40, v{vLane}, 4, v{vBase}")
    a("v_add_u32 v41, s22, v40")
    for t in range(8):
        a(f"ds_write_b128 v41, v[{4*t}:{4*t+3}] offset:{1024*t}")
    a("s_lshl_b32 s22, s96, 11")
    a(f"s_add_u32 s23, s22, {SC}")
    a("v_add_u32 v41, s23, v40")
    a(f"v_lshlrev_b32 v42, 5, v{vC}")
    a(f"v_lshl_add_u32 v42, v{vG}, 3, v42")
    a("s_lshl_b32 s22, s96, 10")
    a("v_add_u32 v42, s22, v42")
    a(f"v_add_u32 v43, v42, v{vBase}")
    a("s_lshl_b32 s22, s20, 12")
    a("v_add_u32 v42, s22, v42")
    a("s_waitcnt lgkmcnt(0)")
    a("s_barrier")
    for src in range(4):
        for k in range(2):
            b = 64 + 8 * src + 4 * k
            a(f"ds_read_b128 v[{b}:{b+3}], v41 offset:{8192*src+1024*k}")
    for k in range(2):
        a(f"ds_read_b64 v[{48+2*k}:{49+2*k}], v43 offset:{U0+32+512*k}")
    a("s_waitcnt lgkmcnt(0)")
    for i in range(8):
        a(f"v_add_f32 v{64+i}, v{64+i}, v{72+i}")
        a(f"v_add_f32 v{80+i}, v{80+i}, v{88+i}")
    for i in range(8):
        a(f"v_add_f32 v{i}, v{64+i}, v{80+i}")
    for k in range(2):
        y = 4 * k
        a(f"v_cvt_pk_bf16_f32 v56, v{y}, v{y+1}")
        a(f"v_cvt_pk_bf16_f32 v57, v{y+2}, v{y+3}")
        a(f"v_lshlrev_b32 v{y}, 16, v56")
        a(f"v_and_b32 v{y+1}, 0xffff0000, v56")
        a(f"v_lshlrev_b32 v{y+2}, 16, v57")
        a(f"v_and_b32 v{y+3}, 0xffff0000, v57")
        a(f"v_lshlrev_b32 v58, 16, v{48+2*k}")
        a(f"v_and_b32 v59, 0xffff0000, v{48+2*k}")
        a(f"v_lshlrev_b32 v60, 16, v{49+2*k}")
        a(f"v_and_b32 v61, 0xffff0000, v{49+2*k}")
        for i in range(4):
            a(f"v_mul_f32 v{58+i}, v{58+i}, v{vDsk}")
        a("v_cvt_pk_bf16_f32 v56, v58, v59")
        a("v_cvt_pk_bf16_f32 v57, v60, v61")
        a("v_lshlrev_b32 v58, 16, v56")
        a("v_and_b32 v59, 0xffff0000, v56")
        a("v_lshlrev_b32 v60, 16, v57")
        a("v_and_b32 v61, 0xffff0000, v57")
        for i in range(4):
            a(f"v_add_f32 v{y+i}, v{y+i}, v{58+i}")
        a(f"v_cvt_pk_bf16_f32 v{62+2*k}, v{y}, v{y+1}")
        a(f"v_cvt_pk_bf16_f32 v{63+2*k}, v{y+2}, v{y+3}")
        a(f"buffer_store_dwordx2 v[{62+2*k}:{63+2*k}], v42, s[52:55], 0 offen offset:{512*k}")
    stamp(a, 6)
    stamp_flush(a, 2, 7, 16, 17)
    a.label("KA_END")
    a("s_endpgm")
    return kernel_desc("ka_kernel", 256), f"; @launch kernel=ka_kernel grid=(256,1,1) block=(512,1,1) lds={2*DSZ}"
```
